```python
import torch

def _softmax(x, axis=-1):
    return torch.softmax(x, dim=axis)

def _gelu(x):
    return torch.nn.functional.gelu(x, approximate='tanh')

def _silu(x):
    return torch.nn.functional.silu(x)

def _sigmoid(x):
    return torch.sigmoid(x)

def _layernorm(x, axis=-1, eps=1e-05):
    m = x.mean(dim=axis, keepdim=True)
    v = x.var(dim=axis, keepdim=True, unbiased=False)
    return (x - m) / torch.sqrt(v + eps)

def _scatter_add(tgt, idx, src, axis=0):
    return tgt.clone().index_add_(axis, idx, src)

def _segment_sum(src, seg, n):
    out = torch.zeros((n,) + src.shape[1:], dtype=src.dtype)
    return out.index_add_(0, seg, src)

def _pad(x, pw):
    flat = tuple((v for pair in reversed(pw) for v in pair))
    return torch.nn.functional.pad(x, flat)
kernel_name = 'sequential_preLN__memory_aug_recurrent_mem_tr__geglu_ffn__prompt'

def setup_inputs():

    _w = lambda a: (lambda t: t.to(torch.bfloat16) if t.is_floating_point() else t)(torch.as_tensor(a))

    def _A_setup():
        B, S, Dm = (1, 2048, 1024)
        H, Dh = (32, 128)
        M, seg = (8, 32)
        seg = min(seg, S)
        S = S // seg * seg
        return {'x': _w((lambda *s: torch.randn(*s, dtype=torch.bfloat16) * 0.05)(B, S, Dm)), 'mem0': _w((lambda *s: torch.randn(*s, dtype=torch.bfloat16) * 0.2)(B, M, Dm)), 'Wq': _w((lambda *s: torch.randn(*s, dtype=torch.bfloat16) * 1.6)(Dm, H, Dh) * Dm ** (-0.5)), 'Wk': _w((lambda *s: torch.randn(*s, dtype=torch.bfloat16) * 1.6)(Dm, H, Dh) * Dm ** (-0.5)), 'Wv': _w((lambda *s: torch.randn(*s, dtype=torch.bfloat16) * 0.2)(Dm, H, Dh) * Dm ** (-0.5)), 'Wo': _w((lambda *s: torch.randn(*s, dtype=torch.bfloat16) * 0.2)(H, Dh, Dm) * (H * Dh) ** (-0.5)), 'seg_len': seg}
    _A_in = _A_setup()

    def _B_setup():
        B, S, D, F = (1, 2048, 1024, 3584)
        return {'x': _w((lambda *s: torch.randn(*s, dtype=torch.bfloat16) * 0.05)(B, S, D)), 'w_gate': _w((lambda *s: torch.randn(*s, dtype=torch.bfloat16) * 0.05)(D, F)), 'w_up': _w((lambda *s: torch.randn(*s, dtype=torch.bfloat16) * 0.05)(D, F)), 'w_down': _w((lambda *s: torch.randn(*s, dtype=torch.bfloat16) * 0.05)(F, D))}
    _B_in = _B_setup()
    return {'A_x': _A_in['x'], 'A_mem0': _A_in['mem0'], 'A_Wq': _A_in['Wq'], 'A_Wk': _A_in['Wk'], 'A_Wv': _A_in['Wv'], 'A_Wo': _A_in['Wo'], 'A_seg_len': _A_in['seg_len'], 'B_x': _B_in['x'], 'B_w_gate': _B_in['w_gate'], 'B_w_up': _B_in['w_up'], 'B_w_down': _B_in['w_down']}

def reference(A_x, A_mem0, A_Wq, A_Wk, A_Wv, A_Wo, A_seg_len, B_x, B_w_gate, B_w_up, B_w_down):

    def _A_ref(x, mem0, Wq, Wk, Wv, Wo, seg_len):
        B, S, Dm = x.shape
        H, Dh = (Wq.shape[1], Wq.shape[2])
        M = mem0.shape[1]
        scale = Dh ** (-0.5)
        n_seg = S // seg_len
        L = M + seg_len
        idx = torch.arange(L)
        mask = (idx[:, None] < M) | (idx[:, None] >= idx[None, :])
        mem = mem0
        outs = []
        for s in range(n_seg):
            xs = x[:, s * seg_len:(s + 1) * seg_len, :].clone()
            h = torch.concatenate([mem, xs], axis=1)
            q = torch.einsum('btd,dhe->bhte', h, Wq)
            k = torch.einsum('btd,dhe->bhte', h, Wk)
            v = torch.einsum('btd,dhe->bhte', h, Wv)
            scores = torch.einsum('bhqe,bhke->bhqk', q, k) * scale
            scores = torch.where(mask[None, None], scores, -1000000000.0)
            p = _softmax(scores, axis=-1)
            o = torch.einsum('bhqk,bhke->bhqe', p, v)
            o = torch.einsum('bhte,hed->btd', o, Wo)
            mem = o[:, :M, :].clone()
            outs.append(o[:, M:, :])
        return torch.concatenate(outs, axis=1)

    def _B_ref(x, w_gate, w_up, w_down):
        return _gelu(x @ w_gate) * (x @ w_up) @ w_down
    x = A_x
    h = x + _A_ref(_layernorm(x, axis=-1), A_mem0, A_Wq, A_Wk, A_Wv, A_Wo, A_seg_len)
    h2 = h + _B_ref(_layernorm(h, axis=-1), B_w_gate, B_w_up, B_w_down)
    return h2
```

```python
import re

TRANS = ("v_exp_f32", "v_log_f32", "v_rcp_f32", "v_rsq_f32", "v_sqrt_f32", "v_sin_f32", "v_cos_f32")
_REG = re.compile(r"^-?\|?(?:abs\()?([vas])(?:(\d+)|\[(\d+):(\d+)\])\)?\|?$")


def regs_of(tok):
    tok = tok.strip()
    if tok in ("vcc", "vcc_lo", "vcc_hi"):
        return {"vcc"}
    if tok in ("exec", "exec_lo", "exec_hi"):
        return {"exec"}
    if tok == "m0":
        return {"m0"}
    m = _REG.match(tok)
    if not m:
        return set()
    k = m.group(1)
    if m.group(2) is not None:
        return {k + m.group(2)}
    return {k + str(i) for i in range(int(m.group(3)), int(m.group(4)) + 1)}


class Ins:
    __slots__ = ("text", "op", "rd", "wr", "kind", "passes", "srcc", "srcab", "states", "target", "dpp", "wide", "lanesel")

    def __init__(self, text):
        self.text = text
        t = text.split(";")[0].strip()
        parts = t.split(None, 1)
        self.op = op = parts[0]
        rest = parts[1] if len(parts) > 1 else ""
        ops = [o.strip() for o in rest.split(",")] if rest else []
        mods = ""
        if ops:
            last = ops[-1].split(None, 1)
            if len(last) > 1:
                ops[-1], mods = last[0], last[1]
        R = [regs_of(o) for o in ops]
        self.rd, self.wr = set(), set()
        self.kind = "other"
        self.passes = 0
        self.srcc, self.srcab = set(), set()
        self.states = 1
        self.target = None
        self.dpp = "_dpp" in op or "row_" in mods or "quad_perm" in mods
        self.wide = False
        self.lanesel = set()
        U = lambda xs: set().union(*xs) if xs else set()
        if op.startswith("v_mfma") or op.startswith("v_smfmac"):
            self.kind = "mfma"
            self.passes = 8 if "32x32" in op else 4
            self.wr = R[0]
            if op.startswith("v_smfmac"):
                self.srcc = R[0]
                self.srcab = R[1] | R[2] | R[3]
            else:
                self.srcc = R[3]
                self.srcab = R[1] | R[2]
            self.rd = self.srcc | self.srcab
        elif op.startswith("v_"):
            self.kind = "trans" if op.replace("_e32", "").replace("_e64", "") in TRANS else "valu"
            if "permlane" in op:
                self.kind = "permlane"
                self.wr = R[0] | R[1]
                self.rd = R[0] | R[1]
            elif op.startswith(("v_readfirstlane", "v_readlane")):
                self.kind = "readlane"
                self.wr = R[0]
                self.rd = U(R[1:])
                self.lanesel = U(R[2:])
            elif op.startswith(("v_add_co", "v_sub_co", "v_addc_co", "v_subb_co")):
                self.wr = R[0] | R[1]
                self.rd = U(R[2:])
            elif op.startswith("v_cmpx"):
                self.wr = R[0] | {"exec"}
                self.rd = U(R[1:])
            elif op == "v_nop":
                pass
            else:
                self.wr = R[0]
                self.rd = U(R[1:])
                if op.startswith(("v_fmac", "v_dot2c", "v_mac", "v_writelane")) or self.dpp or "sdwa" in op:
                    self.rd |= R[0]
        elif op.startswith(("buffer_", "global_")):
            self.kind = "vmem"
            if "load" in op:
                if " lds" in " " + mods or "load_lds" in op:
                    self.rd = U(R) | {"m0"}
                    self.kind = "dma"
                else:
                    self.wr = R[0]
                    self.rd = U(R[1:])
                    if "d16" in op:
                        self.rd |= R[0]
            elif "atomic" in op:
                self.rd = U(R)
                if "sc0" in mods:
                    self.wr = R[0]
            else:
                self.rd = U(R)
                if "x3" in op or "x4" in op:
                    self.wide = True
                    self.srcab = R[0] if op.startswith("buffer_") else R[1]
        elif op.startswith("ds_"):
            self.kind = "ds"
            if "read" in op or "permute" in op or "swizzle" in op:
                self.wr = R[0]
                self.rd = U(R[1:])
            else:
                self.rd = U(R)
        elif op.startswith("s_"):
            self.kind = "salu"
            if op == "s_nop":
                self.states = int(ops[0], 0) + 1
            elif op.startswith(("s_cbranch", "s_branch")):
                self.target = ops[0]
                if "vcc" in op:
                    self.rd = {"vcc"}
            elif op.startswith(("s_cmp", "s_waitcnt", "s_barrier", "s_sleep", "s_setprio", "s_endpgm", "s_bitcmp")):
                self.rd = U(R)
            elif op.startswith(("s_load", "s_memtime", "s_memrealtime")):
                self.kind = "smem"
                self.wr = R[0]
                self.rd = U(R[1:])
            else:
                self.wr = R[0]
                self.rd = U(R[1:])
                if "saveexec" in op:
                    self.wr |= {"exec"}
                    self.rd |= {"exec"}
        else:
            raise ValueError("unknown instruction: " + text)


VALU_KINDS = ("valu", "trans", "permlane", "readlane")


def isv(r):
    return r[0] in "va" and r != "vcc"


def need(p, c):
    n = 0
    pv = p.kind in VALU_KINDS
    cv = c.kind in VALU_KINDS
    if p.kind == "mfma":
        big = 12 if p.passes == 8 else 8
        if c.kind == "mfma":
            if p.wr & c.srcab:
                n = max(n, big)
            if p.wr & (c.srcc | c.wr):
                if not (p.wr == c.srcc and p.passes == c.passes and c.wr == c.srcc):
                    n = max(n, big - 2)
        elif cv or c.kind in ("vmem", "ds", "dma"):
            if p.wr & (c.rd | c.wr):
                n = max(n, big)
            if p.srcc & c.wr:
                n = max(n, 7 if p.passes == 8 else 3)
    if pv:
        w = {r for r in p.wr if isv(r)}
        sw = p.wr - w
        if c.kind == "mfma" and w & c.rd:
            n = max(n, 2)
        if c.kind == "mfma" and "exec" in sw:
            n = max(n, 4)
        if p.kind == "trans" and cv and c.kind != "trans" and w & c.rd:
            n = max(n, 1)
        if "sdwa" in p.op or "op_sel" in p.text:
            if cv and w & (c.rd | c.wr):
                n = max(n, 1)
        if (c.kind == "permlane" or c.dpp) and w & c.rd:
            n = max(n, 2)
        if c.kind == "readlane" and w & c.rd:
            n = max(n, 1)
        if sw:
            if cv and sw & c.rd:
                n = max(n, 2)
            if c.kind == "readlane" and sw & c.lanesel:
                n = max(n, 4)
            if c.kind in ("vmem", "dma") and sw & c.rd:
                n = max(n, 5)
            if c.kind in ("salu", "smem") and sw & c.rd:
                n = max(n, 1)
            if "exec" in sw and (c.kind in ("readlane", "permlane")):
                n = max(n, 4)
            if "exec" in sw and c.dpp:
                n = max(n, 5)
    if p.kind == "salu" and "m0" in p.wr and c.kind == "dma":
        n = max(n, 1)
    if p.wide and p.srcab & c.wr:
        n = max(n, 2 if cv else 1)
    return n


class Asm:
    def __init__(self):
        self.items = []
        self.uid = 0

    def __call__(self, text):
        for line in text.split("\n"):
            line = line.strip()
            if not line or line.startswith(";"):
                continue
            if line.endswith(":"):
                self.items.append(("l", line[:-1]))
            elif line.startswith("."):
                self.items.append(("r", line))
            else:
                self.items.append(("i", Ins(line)))

    def label(self, stem):
        self.uid += 1
        return "L_%s_%d" % (stem, self.uid)

    def fix_hazards(self):
        LIM = 13
        total = 0
        while True:
            items = self.items
            n = len(items)
            branches = {}
            for i, (k, x) in enumerate(items):
                if k == "i" and x.target:
                    branches.setdefault(x.target, []).append(i)
            ins_at = {}
            for i, (k, c) in enumerate(items):
                if k != "i" or c.op in ("s_nop", "s_waitcnt", "s_barrier", "s_branch"):
                    continue
                worst = 0
                stack = [(i - 1, 0)]
                seen = {}
                while stack:
                    j, d = stack.pop()
                    while j >= 0 and d < LIM:
                        if seen.get(j, 99) <= d:
                            break
                        seen[j] = d
                        k2, p = items[j]
                        if k2 == "l":
                            for b in branches.get(p, ()):
                                stack.append((b - 1, d + 1))
                            j -= 1
                            jj = j
                            while jj >= 0 and items[jj][0] != "i":
                                if items[jj][0] == "l":
                                    break
                                jj -= 1
                            if jj >= 0 and items[jj][0] == "i" and items[jj][1].op in ("s_branch", "s_endpgm"):
                                break
                            continue
                        if k2 == "r":
                            j -= 1
                            continue
                        r = need(p, c) - d
                        if r > worst:
                            worst = r
                        d += p.states
                        j -= 1
                if worst > 0:
                    ins_at[i] = worst
            if not ins_at:
                return total
            out = []
            last_fix = -99
            for i, it in enumerate(items):
                if i in ins_at and i - last_fix > LIM:
                    out.append(("i", Ins("s_nop %d" % (ins_at[i] - 1))))
                    total += 1
                    last_fix = i
                out.append(it)
            self.items = out

    def text(self):
        out = []
        for k, x in self.items:
            if k == "i":
                out.append(x.text)
            elif k == "l":
                out.append(x + ":")
            else:
                out.append(x)
        return "\n".join(out) + "\n"


def v(a, n=1):
    return "v%d" % a if n == 1 else "v[%d:%d]" % (a, a + n - 1)


def a(i, n=1):
    return "a%d" % i if n == 1 else "a[%d:%d]" % (i, i + n - 1)


def s(i, n=1):
    return "s%d" % i if n == 1 else "s[%d:%d]" % (i, i + n - 1)


def W(i, n=1):
    if i >= 256:
        return a(i - 256, n)
    assert i + n <= 256
    return v(i, n)
```

```python
from common import *

WSR = "s[%d:%d]" % (SRD_WS, SRD_WS + 3)
S_HI16 = S_R + 18
S_SCALE = S_R + 19
LU, RR, ACC, AR = 16, 48, 64, 80


def smf(A, d, a_, b, idx):
    A("v_smfmac_f32_16x16x64_bf16 %s, %s, %s, %s" % (v(d, 4), v(a_, 4), b, v(idx)))


def chain_setup(A):
    A("s_lshr_b32 s80, s%d, 5" % S_IDX)
    A("s_and_b32 s81, s%d, 15" % S_IDX)
    A("s_lshl_b32 s82, s80, 4")
    A("s_add_u32 s82, s82, s81")
    A("s_mov_b32 s%d, 0xffff0000" % S_HI16)
    A("v_and_b32 v1, 63, v0")


def smf_lane_rows(A, vd, vt):
    A("v_lshrrev_b32 %s, 5, v1" % v(vd))
    A("v_lshlrev_b32 %s, 4, %s" % (v(vd), v(vd)))
    A("v_bfe_u32 %s, v1, 4, 1" % v(vt))
    A("v_lshl_add_u32 %s, %s, 2, %s" % (v(vd), v(vt), v(vd)))


def smf_idx(A, vd, vt):
    A("v_and_b32 %s, 8, v1" % v(vt))
    A("v_mov_b32 %s, 0x4444" % v(vd))
    A("v_mov_b32 v255, 0xeeee")
    A("v_cmp_ne_u32 vcc, 0, %s" % v(vt))
    A("v_cndmask_b32 %s, %s, v255, vcc" % (v(vd), v(vd)))


def ring_consts(A):
    A("s_lshl_b32 s84, s80, 14")
    A("s_xor_b32 s85, s84, 0x4000")
    A("s_add_u32 s84, s84, 0x%x" % (RING_P + 0x8000))
    A("s_add_u32 s85, s85, 0x%x" % RING_P)


def gather_mem(A, cfg, pre, vgl, tmp, s_loc, s_rem, between_a=None, between_b=None):
    ld = lambda so: ["buffer_load_dwordx4 %s, %s, %s, s%d offen offset:%d sc1" % (v(RR + 4 * k, 4), v(vgl), WSR, so, 1024 * k)
                     for k in range(4)]
    poll_data(A, ld(s_loc), range(RR, RR + 16), tmp, "ploc")
    if between_a:
        between_a()
    for d in range(16):
        A("v_lshlrev_b32 %s, 16, %s" % (v(LU + 2 * d), v(RR + d)))
        A("v_and_b32 %s, s%d, %s" % (v(LU + 2 * d + 1), S_HI16, v(RR + d)))
    if between_b:
        between_b()
    stamp(A, cfg, pre + "loc")
    poll_data(A, ld(s_rem), range(RR, RR + 16), tmp, "prem")
    stamp(A, cfg, pre + "rem")
    for k in range(4):
        for d in range(4 * k, 4 * k + 4):
            t = tmp + 2 * (d % 2)
            A("v_lshlrev_b32 %s, 16, %s" % (v(t), v(RR + d)))
            A("v_and_b32 %s, s%d, %s" % (v(t + 1), S_HI16, v(RR + d)))
            A("v_pk_add_f32 %s, %s, %s" % (v(LU + 2 * d, 2), v(LU + 2 * d, 2), v(t, 2)))
            A("v_cvt_pk_bf16_f32 %s, %s, %s" % (v(RR + d), v(LU + 2 * d), v(LU + 2 * d + 1)))
        A("ds_write_b128 %s, %s offset:%d" % (v(vgl), v(RR + 4 * k, 4), 1024 * k))
    stamp(A, cfg, pre + "sum")
    A("s_waitcnt lgkmcnt(0)")
    A("s_barrier")
    stamp(A, cfg, pre + "bar")


def softmax(A, S, T):
    A("v_max3_f32 %s, %s, %s, %s" % (v(T), v(S), v(S + 1), v(S + 2)))
    A("v_max3_f32 %s, %s, %s, %s" % (v(T + 1), v(S + 4), v(S + 5), v(S + 6)))
    A("v_max3_f32 %s, %s, %s, %s" % (v(T), v(T), v(S + 3), v(S + 7)))
    A("v_max3_f32 %s, %s, %s, %s" % (v(T + 1), v(T + 1), v(S + 8), v(S + 9)))
    A("v_max3_f32 %s, %s, %s, %s" % (v(T), v(T), v(S + 10), v(S + 11)))
    A("v_max_f32 %s, %s, %s" % (v(T), v(T), v(T + 1)))
    for sw in ("v_permlane16_swap_b32", "v_permlane32_swap_b32"):
        A("v_mov_b32 %s, %s" % (v(T + 1), v(T)))
        A("%s %s, %s" % (sw, v(T), v(T + 1)))
        A("v_max_f32 %s, %s, %s" % (v(T), v(T), v(T + 1)))
    A("v_mul_f32 %s, s%d, %s" % (v(T), S_SCALE, v(T)))
    for i in range(12):
        A("v_fma_f32 %s, %s, s%d, -%s" % (v(S + i), v(S + i), S_SCALE, v(T)))
        if i:
            A("v_exp_f32 %s, %s" % (v(S + i - 1), v(S + i - 1)))
    A("v_exp_f32 %s, %s" % (v(S + 11), v(S + 11)))
    for i in range(6):
        A("v_cvt_pk_bf16_f32 %s, %s, %s" % (v(S + i), v(S + 2 * i), v(S + 2 * i + 1)))


def mf32(A, d, a_, b, c):
    A("v_mfma_f32_16x16x32_bf16 %s, %s, %s, %s" % (v(d, 4), v(a_, 4), v(b, 4), "0" if c is None else v(c, 4)))


def mf16(A, d, a_, b):
    A("v_mfma_f32_16x16x16_bf16 %s, %s, %s, %s" % (v(d, 4), v(a_, 2), v(b, 2), v(d, 4)))


def role_qk(A, cfg, census):
    L_STAGE, L_KVQ, L_QM, L_KM, L_WL = 0, 16384, 40960, 43264, 46080
    NL = 14
    V_FL, V_FQ, V_GL, V_IDX, V_DMA, V_ST, V_THR, V_WL, V_QW, V_QR, V_VM, V_OM, V_OX, V_VX, V_QX, V_NEG = range(16)
    WR = 92
    KX, VM, VX, S, T, Q, KM = 16, 48, 56, 64, 76, 80, 96

    def home(ks, f):
        if f == 3 and ks >= 2:
            return None
        n = 4 * ks + f if ks < 2 else 8 + 3 * (ks - 2) + f
        return 256 + 8 * n if n < 32 else 112 + 8 * (n - 32)

    A("L_role_qk:")
    chain_setup(A)
    ring_consts(A)
    A("s_cmp_lt_u32 s%d, 2" % S_W)
    srd_sel(A, SRD_A, P_WQ, P_WK, 1024 * 4096 * 2)
    smf_lane_rows(A, 20, 21)
    A("v_lshlrev_b32 v20, 13, v20")
    A("v_and_b32 v21, 15, v1")
    A("v_lshl_add_u32 v20, v21, 3, v20")
    A("s_and_b32 s64, s%d, 1" % S_W)
    A("s_lshl_b32 s64, s64, 7")
    A("s_lshl_b32 s65, s82, 8")
    A("s_add_u32 s64, s64, s65")
    A("v_add_u32 v20, s64, v20")
    flag_addr_own(A, 22, 1, S_IDX)
    smf_idx(A, V_IDX, 21)
    A("v_lshlrev_b32 %s, 4, v1" % v(V_ST))
    A("s_lshl_b32 s64, s%d, 12" % S_W)
    A("v_add_u32 %s, s64, %s" % (v(V_GL), v(V_ST)))
    A("s_mul_i32 s64, s%d, 6144" % S_W)
    A("v_add_u32 %s, s64, %s" % (v(V_DMA), v(V_ST)))
    A("s_mul_i32 s64, s%d, %d" % (S_W, NL * 2048))
    A("s_add_u32 s64, s64, %d" % L_WL)
    A("v_add_u32 %s, s64, %s" % (v(V_WL), v(V_ST)))
    A("s_and_b32 s66, s%d, 1" % S_W)
    A("s_lshr_b32 s67, s%d, 1" % S_W)
    A("v_lshrrev_b32 v21, 5, v1")
    A("v_mul_u32_u24 v21, 36, v21")
    A("v_and_b32 v23, 15, v1")
    A("v_add_u32 v21, v21, v23")
    A("v_lshlrev_b32 v21, 4, v21")
    A("v_bfe_u32 v24, v1, 4, 1")
    A("v_lshl_add_u32 v21, v24, 3, v21")
    A("s_lshl_b32 s64, s66, 8")
    A("s_mul_i32 s65, s67, %d" % (L_KM - L_QM))
    A("s_add_u32 s64, s64, s65")
    A("s_add_u32 s64, s64, %d" % L_QM)
    A("v_add_u32 %s, s64, v21" % v(V_QW))
    A("v_bfe_u32 v21, v1, 2, 2")
    A("v_mul_u32_u24 v21, 36, v21")
    A("v_lshrrev_b32 v24, 4, v1")
    A("v_lshl_add_u32 v21, v24, 1, v21")
    A("v_lshlrev_b32 v21, 4, v21")
    A("v_and_b32 v25, 1, v1")
    A("v_lshl_add_u32 %s, v25, 3, v21" % v(V_QR))
    A("s_lshl_b32 s64, s%d, 9" % S_W)
    A("v_add_u32 v21, s64, %s" % v(V_ST))
    A("v_mov_b32 v25, 0x%x" % OOB)
    A("v_cmp_gt_u32 vcc, 32, v1")
    A("v_cndmask_b32 %s, v25, v21, vcc" % v(V_VM))
    A("v_mov_b32 v26, 0xff800000")
    A("v_cndmask_b32 %s, v26, 0, vcc" % v(V_NEG))
    A("v_lshlrev_b32 v21, 7, v24")
    A("v_lshl_add_u32 v21, v23, 4, v21")
    A("v_add_u32 v21, s64, v21")
    A("v_cmp_gt_u32 vcc, 8, v23")
    A("v_cndmask_b32 %s, v25, v21, vcc" % v(V_OM))
    A("v_lshlrev_b32 v21, 9, v24")
    A("v_lshl_add_u32 v21, v23, 4, v21")
    A("s_lshl_b32 s64, s%d, 11" % S_W)
    A("s_lshl_b32 s65, s66, 8")
    A("s_add_u32 s65, s65, s64")
    A("v_add_u32 %s, s65, v21" % v(V_OX))
    A("s_add_u32 s64, s64, %d" % (L_KVQ + 8192))
    A("v_add_u32 %s, s64, %s" % (v(V_VX), v(V_ST)))
    A("s_lshl_b32 s64, s66, 12")
    A("s_add_u32 s64, s64, %d" % (L_KVQ + 16384))
    A("v_add_u32 %s, s64, %s" % (v(V_QX), v(V_ST)))
    A("s_lshl_b32 s64, s66, 4")
    A("v_add_u32 v21, s64, v23")
    A("v_lshlrev_b32 v24, 2, v24")
    A("v_sub_u32 %s, v21, v24" % v(V_THR))
    A("s_lshr_b32 s64, s82, 3")
    A("s_lshl_b32 s64, s64, 5")
    A("s_and_b32 s65, s82, 7")
    A("s_lshl_b32 s65, s65, 1")
    A("s_add_u32 s64, s64, s65")
    A("s_add_u32 s64, s64, 128")
    A("s_lshl_b32 s64, s64, 7")
    A("v_bfe_u32 v21, v1, 2, 1")
    A("v_lshlrev_b32 v21, 7, v21")
    A("v_and_b32 v23, 3, v1")
    A("v_lshl_add_u32 v21, v23, 2, v21")
    A("v_add_u32 %s, s64, v21" % v(V_FQ))
    A("v_mov_b32 %s, v22" % v(V_FL))
    A("s_mov_b32 s%d, 0x3e0293ee" % S_SCALE)
    A("s_lshl_b32 s86, s80, 15")
    A("s_lshl_b32 s64, s81, 11")
    A("s_add_u32 s86, s86, s64")
    A("s_add_u32 s86, s86, 0x%x" % RING_O)
    A("s_lshl_b32 s87, s82, 11")
    A("s_add_u32 s87, s87, 0x%x" % RING_V)
    A("s_mul_i32 s88, s82, 24576")
    A("s_add_u32 s88, s88, 0x%x" % KVQ)
    A("s_lshl_b32 s89, s82, 13")
    A("s_add_u32 s89, s89, 0x%x" % OX)
    A("s_mul_i32 s90, s%d, 6144" % S_W)
    A("s_add_u32 s90, s90, %d" % L_KVQ)

    units = []
    for ks in range(16):
        for j in range(8):
            row = 64 * ks + smf_row(j)
            outs = []
            for f in range(4):
                h = home(ks, f)
                outs.append((("t", j) if h is None else h + j, f // 2, S_SELHI if f % 2 else S_SELLO))
            post = []
            if j % 4 == 3 and ks >= 2:
                post = ["ds_write_b128 %s, %s offset:%d" % (v(V_WL), v(24 + j - 3, 4), (ks - 2) * 2048 + (j // 4) * 1024)]
            units.append(dict(width=2, loads=[bload(2, 20, SRD_A, (row + u) * 8192) for u in range(2)], outs=outs, post=post))
    load_weights(A, units, set(range(32, 256)), [16, 17, 18, 19], ldsbuf=24)
    A("s_waitcnt lgkmcnt(0)")
    census(A)
    A("s_mov_b32 s%d, 0" % S_STEP)
    A("buffer_load_dword v111, %s, %s, 0 offen sc1" % (v(V_FQ), WSR))
    A("s_waitcnt vmcnt(0)")

    A("L_qk_top:")
    A("s_and_b32 s64, s%d, 3" % S_STEP)
    A("s_lshl_b32 s64, s64, 16")
    A("s_add_u32 s91, s84, s64")
    A("s_add_u32 s92, s85, s64")
    A("s_add_u32 s93, s86, s64")
    A("s_add_u32 s94, s87, s64")
    A("s_xor_b32 s64, s64, 0x20000")
    A("s_add_u32 s95, s86, s64")
    A("s_add_u32 s96, s%d, 1" % S_STEP)
    poll_flags(A, V_FQ, 111, 96, "fq", preissued=2)
    A("s_mov_b32 m0, s90")
    for k in range(4):
        A("buffer_load_dwordx4 %s, %s, s88 offen offset:%d sc1 lds" % (v(V_DMA), WSR, 1024 * k))
    A("s_add_u32 s64, s90, 4096")
    A("s_add_u32 s65, s88, 4096")
    A("s_mov_b32 m0, s64")
    for k in range(2):
        A("buffer_load_dwordx4 %s, %s, s65 offen offset:%d sc1 lds" % (v(V_DMA), WSR, 1024 * k))
    for r in range(4):
        A("v_mov_b32 %s, -1" % v(ACC + r))
    local_store(A, ["buffer_store_dwordx4 %s, %s, %s, s95 offen" % (v(ACC, 4), v(V_OM), WSR)])

    L = Cnt(A, "lgkmcnt", 15)

    def wread(ks):
        for hf in range(2):
            L.issue(("w", ks), "ds_read_b128 %s, %s offset:%d" % (v(WR + 8 * (ks % 2) + 4 * hf, 4), v(V_WL), (ks - 2) * 2048 + hf * 1024))

    def aread(ks):
        L.issue(("a", ks), "ds_read_b128 %s, %s offset:%d" % (v(AR + 4 * (ks % 3), 4), v(V_ST), L_STAGE + ks * 1024))

    def pre_a():
        set_flag(A, V_FL, 108, S_STEP)

    def pre_b():
        wread(2)
        wread(3)
        for r in range(16):
            A("v_mov_b32 %s, 0" % v(ACC + r))

    gather_mem(A, cfg, "q", V_GL, 108, 91, 92, pre_a, pre_b)
    L.q = []
    for ks in range(3):
        aread(ks)
    extra = [("kx", KX + 4 * n, V_ST, L_KVQ + 1024 * n) for n in range(8)] + [("vx", VX + 4 * n, V_VX, 1024 * n) for n in range(2)]
    for ks in range(16):
        L.wait(("a", ks))
        for f in range(4):
            h = home(ks, f)
            if h is None:
                L.wait(("w", ks))
                smf(A, ACC + 4 * f, AR + 4 * (ks % 3), v(WR + 8 * (ks % 2), 8), V_IDX)
            else:
                smf(A, ACC + 4 * f, AR + 4 * (ks % 3), W(h, 8), V_IDX)
            if ks >= 11 and f in (0, 1) and extra:
                tag, d, va, off = extra.pop(0)
                L.issue(tag, "ds_read_b128 %s, %s offset:%d" % (v(d, 4), v(va), off))
        if ks >= 2 and ks + 2 < 16:
            wread(ks + 2)
        if ks + 3 < 16:
            aread(ks + 3)
    assert not extra
    stamp(A, cfg, "qmf")
    for pp in range(2):
        b = ACC + 8 * pp
        for r in range(4):
            A("v_permlane32_swap_b32 %s, %s" % (v(b + r), v(b + 4 + r)))
        for r in range(0, 4, 2):
            A("v_pk_add_f32 %s, %s, %s" % (v(b + r, 2), v(b + r, 2), v(b + 4 + r, 2)))
        A("v_cvt_pk_bf16_f32 %s, %s, %s" % (v(b), v(b), v(b + 1)))
        A("v_cvt_pk_bf16_f32 %s, %s, %s" % (v(b + 1), v(b + 2), v(b + 3)))
        A("ds_write_b64 %s, %s offset:%d" % (v(V_QW), v(b, 2), 1152 * pp))
    stamp(A, cfg, "qfold")
    A("s_waitcnt lgkmcnt(0)")
    A("s_barrier")
    stamp(A, cfg, "qbar2")
    L.q = []
    vm_loads = ["buffer_load_dwordx4 %s, %s, %s, s94 offen sc1" % (v(VM, 4), v(V_VM), WSR),
                "buffer_load_dwordx4 %s, %s, %s, s94 offen sc1" % (v(VM + 4, 4), v(T + 3), WSR)]

    def tr(dst, base, kk, tag):
        for hf in range(2):
            L.issue(tag, "ds_read_b64_tr_b16 %s, %s offset:%d" % (v(dst + 4 * kk + 2 * hf, 2), v(V_QR), base + 16 * (8 * kk + hf)))

    def vm_check():
        ok = A.label("vmok")
        A("s_waitcnt vmcnt(0)")
        check_sent(A, range(VM, VM + 8), T)
        A("s_cbranch_vccz %s" % ok)
        poll_data(A, vm_loads, range(VM, VM + 8), T, "pvm")
        A(ok + ":")

    A("s_cmp_eq_u32 s%d, 63" % S_STEP)
    A("s_cbranch_scc1 L_qk_last")
    for kk in range(4):
        tr(Q, L_QM, kk, ("q", kk))
    for kk in range(4):
        tr(KM, L_KM, kk, ("km", kk))
    A("v_xor_b32 %s, 512, %s" % (v(T + 3), v(V_VM)))
    for t in vm_loads:
        A(t)
    for r in range(4):
        A("v_mov_b32 %s, %s" % (v(S + 8 + r), v(V_NEG)))
    for kk in range(4):
        L.wait(("q", kk))
        mf32(A, S, KX + 4 * kk, Q + 4 * kk, None if kk == 0 else S)
        mf32(A, S + 4, KX + 16 + 4 * kk, Q + 4 * kk, None if kk == 0 else S + 4)
    for kk in range(4):
        L.wait(("km", kk))
        mf32(A, S + 8, KM + 4 * kk, Q + 4 * kk, S + 8)
    for r in range(4):
        A("v_mov_b32 %s, 0x3f803f80" % v(92 + r))
    stamp(A, cfg, "qs")
    softmax(A, S, T)
    stamp(A, cfg, "qsm")
    vm_check()
    stamp(A, cfg, "qvm")
    O = 80
    mf32(A, O + 8, 92, S, None)
    mf32(A, O, VX, S, None)
    mf32(A, O + 4, VX + 4, S, None)
    mf16(A, O + 8, 92, S + 4)
    mf16(A, O, VM, S + 4)
    mf16(A, O + 4, VM + 2, S + 4)
    A("v_rcp_f32 %s, %s" % (v(T), v(O + 8)))
    for r in range(4):
        A("v_mul_f32 %s, %s, %s" % (v(O + r), v(O + r), v(T)))
        A("v_mul_f32 %s, %s, %s" % (v(O + 4 + r), v(O + 4 + r), v(T)))
        A("v_cvt_pk_bf16_f32 %s, %s, %s" % (v(S + r), v(O + r), v(O + 4 + r)))
        A("v_min_u32 %s, s%d, %s" % (v(S + r), S_CLAMP, v(S + r)))
    local_store(A, ["buffer_store_dwordx4 %s, %s, %s, s93 offen" % (v(S, 4), v(V_OM), WSR)])
    stamp(A, cfg, "qpub")
    A("s_branch L_qk_x")
    A("L_qk_last:")
    L.q = []
    for kk in range(4):
        tr(KM, L_KM, kk, ("km", kk))
    A("v_xor_b32 %s, 512, %s" % (v(T + 3), v(V_VM)))
    poll_data(A, vm_loads, range(VM, VM + 8), T, "pvl")
    A("s_waitcnt lgkmcnt(0)")

    A("L_qk_x:")
    L.q = []
    for kk in range(4):
        L.issue(("q", kk), "ds_read_b128 %s, %s offset:%d" % (v(Q + 4 * kk, 4), v(V_QX), 1024 * kk))
    A("v_mov_b32 %s, 0xff800000" % v(T))
    for i in range(8):
        A("v_cmp_gt_i32 vcc, %d, %s" % (16 * (i // 4) + i % 4, v(V_THR)))
        A("v_cndmask_b32 %s, 0, %s, vcc" % (v(S + i), v(T)))
    for r in range(4):
        A("v_mov_b32 %s, %s" % (v(S + 8 + r), v(V_NEG)))
    for kk in range(4):
        L.wait(("q", kk))
        mf32(A, S, KX + 4 * kk, Q + 4 * kk, S)
        mf32(A, S + 4, KX + 16 + 4 * kk, Q + 4 * kk, S + 4)
        mf32(A, S + 8, KM + 4 * kk, Q + 4 * kk, S + 8)
    A("v_xor_b32 %s, 2048, %s" % (v(T + 2), v(V_VX)))
    for n in range(2):
        L.issue("vb", "ds_read_b128 %s, %s offset:%d" % (v(KX + 4 * n, 4), v(T + 2), 1024 * n))
    A("buffer_load_dword v111, %s, %s, 0 offen sc1" % (v(V_FQ), WSR))
    for r in range(4):
        A("v_mov_b32 %s, 0x3f803f80" % v(80 + r))
    softmax(A, S, T)
    L.drain()
    A("s_barrier")
    O = 84
    mf32(A, O + 16, 80, S, None)
    mf32(A, O, VX, S, None)
    mf32(A, O + 4, VX + 4, S, None)
    mf32(A, O + 8, KX, S, None)
    mf32(A, O + 12, KX + 4, S, None)
    mf16(A, O + 16, 80, S + 4)
    for n in range(4):
        mf16(A, O + 4 * n, VM + 2 * n, S + 4)
    A("v_rcp_f32 %s, %s" % (v(T), v(O + 16)))
    A("v_xor_b32 %s, 2048, %s" % (v(T + 2), v(V_OX)))
    for p in range(2):
        for r in range(4):
            b = O + 8 * p
            A("v_mul_f32 %s, %s, %s" % (v(b + r), v(b + r), v(T)))
            A("v_mul_f32 %s, %s, %s" % (v(b + 4 + r), v(b + 4 + r), v(T)))
            A("v_cvt_pk_bf16_f32 %s, %s, %s" % (v(S + 4 * p + r), v(b + r), v(b + 4 + r)))
        A("buffer_store_dwordx4 %s, %s, %s, s89 offen sc1" % (v(S + 4 * p, 4), v(V_OX if p == 0 else T + 2), WSR))
    stamp(A, cfg, "qx")
    stamp_flush(A, cfg, 108, 6)
    A("s_add_u32 s88, s88, %d" % (32 * 24576))
    A("s_add_u32 s89, s89, 0x40000")
    A("s_add_u32 s%d, s%d, 1" % (S_STEP, S_STEP))
    A("s_cmp_lt_u32 s%d, 64" % S_STEP)
    A("s_cbranch_scc1 L_qk_top")
    A("s_waitcnt vmcnt(0)")
    set_flag(A, V_FL, 108, S_STEP)
    A("s_endpgm")


def role_vo(A, cfg, census):
    L_RED, L_WL = 16384, 26624
    V_GL, V_IDX, V_ST, V_WL, V_VM, V_OG, V_RW, V_RR, V_PO = 2, 3, 4, 5, 6, 7, 8, 9, 10
    WR, T, OF = 96, 112, 16
    A("L_role_vo:")
    chain_setup(A)
    ring_consts(A)
    srd(A, SRD_A, P_WV, 1024 * 4096 * 2)
    srd(A, SRD_B, P_WO, 1024 * 4096 * 2)
    smf_idx(A, V_IDX, 21)
    smf_lane_rows(A, 22, 21)
    A("v_and_b32 v23, 15, v1")
    A("v_lshlrev_b32 v20, 13, v22")
    A("v_lshl_add_u32 v20, v23, 2, v20")
    A("s_lshl_b32 s64, s82, 8")
    A("s_lshl_b32 s65, s%d, 6" % S_W)
    A("s_add_u32 s64, s64, s65")
    A("v_add_u32 v20, s64, v20")
    A("v_lshlrev_b32 v21, 11, v22")
    A("v_lshl_add_u32 v21, v23, 3, v21")
    A("s_lshl_b32 s64, s80, 22")
    A("s_lshl_b32 s65, s%d, 20" % S_W)
    A("s_add_u32 s64, s64, s65")
    A("s_lshl_b32 s65, s81, 7")
    A("s_add_u32 s64, s64, s65")
    A("v_add_u32 v21, s64, v21")
    A("v_lshlrev_b32 %s, 4, v1" % v(V_ST))
    A("s_lshl_b32 s64, s%d, 12" % S_W)
    A("v_add_u32 %s, s64, %s" % (v(V_GL), v(V_ST)))
    A("s_lshl_b32 s64, s%d, 13" % S_W)
    A("v_add_u32 %s, s64, %s" % (v(V_OG), v(V_ST)))
    A("s_lshl_b32 s64, s%d, 15" % S_W)
    A("s_add_u32 s64, s64, %d" % L_WL)
    A("v_add_u32 %s, s64, %s" % (v(V_WL), v(V_ST)))
    A("v_and_b32 v24, 31, v1")
    A("v_lshlrev_b32 v24, 4, v24")
    A("v_lshrrev_b32 v25, 5, v1")
    A("v_lshl_add_u32 v24, v25, 3, v24")
    A("s_lshl_b32 s64, s%d, 9" % S_W)
    A("v_add_u32 %s, s64, v24" % v(V_VM))
    A("v_bfe_u32 v24, v1, 4, 1")
    A("v_lshl_add_u32 v24, v24, 1, v25")
    A("v_mul_u32_u24 v24, 576, v24")
    A("v_lshl_add_u32 v24, v23, 4, v24")
    A("s_mul_i32 s64, s%d, 2304" % S_W)
    A("s_add_u32 s64, s64, %d" % L_RED)
    A("v_add_u32 %s, s64, v24" % v(V_RW))
    A("v_bfe_u32 v24, v1, 2, 3")
    A("v_mul_u32_u24 v26, 288, v24")
    A("v_lshl_add_u32 v26, v25, 5, v26")
    A("v_and_b32 v27, 3, v1")
    A("v_lshl_add_u32 v26, v27, 3, v26")
    A("s_lshl_b32 s64, s%d, 6" % S_W)
    A("s_add_u32 s64, s64, %d" % L_RED)
    A("v_add_u32 %s, s64, v26" % v(V_RR))
    A("s_lshl_b32 s64, s81, 10")
    A("s_lshl_b32 s65, s%d, 8" % S_W)
    A("s_add_u32 s64, s64, s65")
    A("v_lshlrev_b32 v26, 2, v1")
    A("v_add_u32 %s, s64, v26" % v(V_PO))
    A("v_lshlrev_b32 v11, 11, v24")
    A("v_lshl_add_u32 v11, v25, 4, v11")
    A("v_lshl_add_u32 v11, v27, 2, v11")
    A("s_lshl_b32 s64, s81, 7")
    A("s_lshl_b32 s65, s%d, 5" % S_W)
    A("s_add_u32 s64, s64, s65")
    A("v_add_u32 v11, s64, v11")
    A("s_lshl_b32 s86, s80, 15")
    A("s_add_u32 s86, s86, 0x%x" % RING_O)
    A("s_lshl_b32 s87, s82, 11")
    A("s_add_u32 s87, s87, 0x%x" % RING_V)
    A("s_xor_b32 s88, s85, 0x4000")

    units = []
    for ks in range(16):
        for j in range(8):
            row = 64 * ks + smf_row(j)
            post = []
            if j % 4 == 3:
                post = ["ds_write_b128 %s, %s offset:%d" % (v(V_WL), v(24 + j - 3, 4), ks * 2048 + (j // 4) * 1024)]
            units.append(dict(width=1, loads=[bload(1, 20, SRD_A, (row + u) * 8192) for u in range(2)],
                              outs=[(128 + 8 * ks + j, 0, S_SELLO), (("t", j), 0, S_SELHI)], post=post))
    wo = []
    for ks in range(8):
        for j in range(8):
            row = 64 * ks + smf_row(j)
            wo.append(dict(width=2, loads=[bload(2, 21, SRD_B, (row + u) * 2048) for u in range(2)],
                           outs=[(256 + 32 * ks + 8 * f + j, f // 2, S_SELHI if f % 2 else S_SELLO) for f in range(4)]))
    load_weights(A, wo + units, set(range(32, 256)), [16, 17, 18, 19], ldsbuf=24)
    A("s_waitcnt lgkmcnt(0)")
    srd(A, SRD_A, P_MEM, 8 * 1024 * 2)
    A("buffer_load_dword v16, v11, s[%d:%d], 0 offen" % (SRD_A, SRD_A + 3))
    census(A)
    A("s_cmp_eq_u32 s80, 0")
    A("s_cselect_b32 s64, -1, 0")
    A("s_waitcnt vmcnt(0)")
    A("v_and_b32 v16, s64, v16")
    A("v_min_u32 v16, s%d, v16" % S_CLAMP)
    A("buffer_store_dword v16, %s, %s, s88 offen sc1" % (v(V_PO), WSR))
    local_store(A, ["buffer_store_dword v16, %s, %s, s84 offen" % (v(V_PO), WSR)])
    A("s_mov_b32 s%d, 0" % S_STEP)

    A("L_vo_top:")
    A("s_and_b32 s64, s%d, 3" % S_STEP)
    A("s_lshl_b32 s64, s64, 16")
    A("s_add_u32 s91, s84, s64")
    A("s_add_u32 s92, s85, s64")
    A("s_add_u32 s93, s86, s64")
    A("s_add_u32 s94, s87, s64")
    A("s_xor_b32 s65, s64, 0x20000")
    A("s_add_u32 s66, s64, 0x10000")
    A("s_and_b32 s66, s66, 0x30000")
    A("s_add_u32 s95, s88, s66")
    A("s_add_u32 s96, s84, s66")
    A("s_add_u32 s97, s88, s65")
    A("s_add_u32 s89, s84, s65")
    A("s_add_u32 s90, s87, s65")
    L = Cnt(A, "lgkmcnt", 15)

    def wread(ks):
        for hf in range(2):
            L.issue(("w", ks), "ds_read_b128 %s, %s offset:%d" % (v(WR + 8 * (ks % 2) + 4 * hf, 4), v(V_WL), ks * 2048 + hf * 1024))

    def aread(ks):
        L.issue(("a", ks), "ds_read_b128 %s, %s offset:%d" % (v(AR + 4 * (ks % 4), 4), v(V_ST), ks * 1024))

    def pre_b():
        wread(0)
        wread(1)
        for r in range(8):
            A("v_mov_b32 %s, 0" % v(ACC + r))

    gather_mem(A, cfg, "v", V_GL, T, 91, 92, None, pre_b)
    L.q = []
    for ks in range(4):
        aread(ks)
    for ks in range(16):
        L.wait(("a", ks))
        smf(A, ACC, AR + 4 * (ks % 4), v(128 + 8 * ks, 8), V_IDX)
        L.wait(("w", ks))
        smf(A, ACC + 4, AR + 4 * (ks % 4), v(WR + 8 * (ks % 2), 8), V_IDX)
        if ks + 2 < 16:
            wread(ks + 2)
        if ks + 4 < 16:
            aread(ks + 4)
    stamp(A, cfg, "vmf")
    for r in range(4):
        A("v_permlane32_swap_b32 %s, %s" % (v(ACC + r), v(ACC + 4 + r)))
    for r in range(0, 4, 2):
        A("v_pk_add_f32 %s, %s, %s" % (v(ACC + r, 2), v(ACC + r, 2), v(ACC + 4 + r, 2)))
    for r in range(2):
        A("v_cvt_pk_bf16_f32 %s, %s, %s" % (v(T + r), v(ACC + 2 * r), v(ACC + 2 * r + 1)))
        A("v_min_u32 %s, s%d, %s" % (v(T + r), S_CLAMP, v(T + r)))
    A("v_mov_b32 %s, -1" % v(T + 2))
    A("v_mov_b32 %s, -1" % v(T + 3))
    local_store(A, ["buffer_store_dwordx2 %s, %s, %s, s94 offen" % (v(T, 2), v(V_VM), WSR),
                    "buffer_store_dwordx2 %s, %s, %s, s90 offen" % (v(T + 2, 2), v(V_VM), WSR),
                    "buffer_store_dword %s, %s, %s, s89 offen" % (v(T + 2), v(V_PO), WSR)])
    A("buffer_store_dword %s, %s, %s, s97 offen sc1" % (v(T + 2), v(V_PO), WSR))
    stamp(A, cfg, "vvm")
    A("s_cmp_eq_u32 s%d, 63" % S_STEP)
    A("s_cbranch_scc1 L_end")
    for r in range(16):
        A("v_mov_b32 %s, 0" % v(ACC + r))
    A("s_add_u32 s64, s93, 4096")
    ol = ["buffer_load_dwordx4 %s, %s, %s, s%d offen offset:%d sc1" % (v(OF + 4 * k, 4), v(V_OG), WSR, 93 if k < 4 else 64, 1024 * (k % 4))
          for k in range(8)]
    poll_data(A, ol, range(OF, OF + 32), T + 4, "po")
    stamp(A, cfg, "vo")
    for ks in range(8):
        for f in range(4):
            smf(A, ACC + 4 * f, OF + 4 * ks, a(32 * ks + 8 * f, 8), V_IDX)
    stamp(A, cfg, "vmf2")
    for u in range(2):
        for f in range(4):
            A("v_permlane32_swap_b32 %s, %s" % (v(ACC + 4 * f + u), v(ACC + 4 * f + u + 2)))
        for f in range(4):
            A("v_add_f32 %s, %s, %s" % (v(T + 4 * u + f), v(ACC + 4 * f + u), v(ACC + 4 * f + u + 2)))
        A("ds_write_b128 %s, %s offset:%d" % (v(V_RW), v(T + 4 * u, 4), 288 * u))
    A("s_waitcnt lgkmcnt(0)")
    A("s_barrier")
    stamp(A, cfg, "vbar2")
    for k in range(4):
        A("ds_read_b64 %s, %s offset:%d" % (v(ACC + 2 * k, 2), v(V_RR), 2304 * k))
    A("s_waitcnt lgkmcnt(2)")
    A("v_pk_add_f32 %s, %s, %s" % (v(ACC, 2), v(ACC, 2), v(ACC + 2, 2)))
    A("s_waitcnt lgkmcnt(0)")
    A("v_pk_add_f32 %s, %s, %s" % (v(ACC + 4, 2), v(ACC + 4, 2), v(ACC + 6, 2)))
    A("v_pk_add_f32 %s, %s, %s" % (v(ACC, 2), v(ACC, 2), v(ACC + 4, 2)))
    A("v_cvt_pk_bf16_f32 %s, %s, %s" % (v(ACC), v(ACC), v(ACC + 1)))
    A("v_min_u32 %s, s%d, %s" % (v(ACC), S_CLAMP, v(ACC)))
    A("buffer_store_dword %s, %s, %s, s95 offen sc1" % (v(ACC), v(V_PO), WSR))
    local_store(A, ["buffer_store_dword %s, %s, %s, s96 offen" % (v(ACC), v(V_PO), WSR)])
    stamp(A, cfg, "vpub")
    stamp_flush(A, cfg, 126, 6)
    A("s_add_u32 s%d, s%d, 1" % (S_STEP, S_STEP))
    A("s_branch L_vo_top")
```

```python
from asmlib import Asm, v, a, s, W

NAME = "sequential_preLN__memory_aug_recurrent_mem_tr__geglu_ffn__prompt"

WS_BYTES = 268435456
FLAGS = 0x0
RING_P = 0x10000
RING_O = 0x50000
RING_V = 0x90000
RING_END = 0xD0000
XN = 0x100000
STAMPS = 0x600000
KVQ = 0x1000000
OX = 0x4000000
P1 = 0x5000000
HB = 0x6000000
HN = 0x6400000
ACT = 0x7000000
P2 = 0x8000000


def id_qk(h):
    return (h // 16) * 32 + h % 16


def id_qkv(c):
    return 128 + (c // 16) * 32 + c % 16


def id_f1(c):
    return 128 + (c // 14) * 32 + 16 + c % 14


def id_aux(j):
    return 128 + (j // 2) * 32 + 30 + j % 2


P_X, P_MEM, P_WQ, P_WK, P_WV, P_WO = 8, 10, 12, 14, 16, 18
P_WG, P_WU, P_WD, P_OUT, P_DBG, P_WS = 24, 26, 28, 30, 32, 34
SRD_WS, SRD_DBG, SRD_A, SRD_B = 36, 40, 44, 48
S_W, S_IDX, S_SLOW, S_STEP, S_XCC, S_TICK, S_CENS, S_SPIN = 56, 57, 58, 59, 60, 61, 62, 63
S_SELLO, S_SELHI, S_CLAMP, S_SUB = 52, 53, 54, 55
S_T = 64
S_R = 80
SPIN_LIMIT = 1 << 17
OOB = 0x7FFF0000


class Cnt:
    def __init__(self, asm, name, mx):
        self.asm, self.name, self.mx = asm, name, mx
        self.q = []

    def issue(self, tag, text):
        self.asm(text)
        self.q.append(tag)

    def wait(self, tag):
        if tag not in self.q:
            return
        i = len(self.q) - 1 - self.q[::-1].index(tag)
        n = min(len(self.q) - 1 - i, self.mx)
        self.asm("s_waitcnt %s(%d)" % (self.name, n))
        self.q = self.q[len(self.q) - n:] if n else []

    def drain(self):
        self.asm("s_waitcnt %s(0)" % self.name)
        self.q = []


def srd(A, d, ptr, nbytes):
    A("s_mov_b32 s%d, s%d" % (d, ptr))
    A("s_and_b32 s%d, s%d, 0xffff" % (d + 1, ptr + 1))
    A("s_mov_b32 s%d, 0x%x" % (d + 2, nbytes))
    A("s_mov_b32 s%d, 0x20000" % (d + 3))


def srd_sel(A, d, ptr_true, ptr_false, nbytes):
    A("s_cselect_b32 s%d, s%d, s%d" % (d, ptr_true, ptr_false))
    A("s_cselect_b32 s%d, s%d, s%d" % (d + 1, ptr_true + 1, ptr_false + 1))
    A("s_and_b32 s%d, s%d, 0xffff" % (d + 1, d + 1))
    A("s_mov_b32 s%d, 0x%x" % (d + 2, nbytes))
    A("s_mov_b32 s%d, 0x20000" % (d + 3))


def spin(A, again):
    A("s_add_u32 s%d, s%d, 1" % (S_SPIN, S_SPIN))
    A("s_cmp_lt_u32 s%d, 0x%x" % (S_SPIN, SPIN_LIMIT))
    A("s_cbranch_scc1 %s" % again)
    A("s_branch L_giveup")


def check_sent(A, regs, tmp):
    regs = list(regs)
    if len(regs) == 2:
        A("v_max_u32 %s, %s, %s" % (v(tmp), v(regs[0]), v(regs[1])))
        rest = []
    else:
        A("v_max3_u32 %s, %s, %s, %s" % (v(tmp), v(regs[0]), v(regs[1]), v(regs[2])))
        rest = regs[3:]
    while len(rest) >= 2:
        A("v_max3_u32 %s, %s, %s, %s" % (v(tmp), v(tmp), v(rest[0]), v(rest[1])))
        rest = rest[2:]
    if rest:
        A("v_max_u32 %s, %s, %s" % (v(tmp), v(tmp), v(rest[0])))
    A("v_cmp_eq_u32 vcc, -1, %s" % v(tmp))


def poll_data(A, loads, regs, tmp, stem):
    top, ok = A.label(stem), A.label(stem + "_ok")
    A(top + ":")
    for t in loads:
        A(t)
    A("s_waitcnt vmcnt(0)")
    check_sent(A, regs, tmp)
    A("s_cbranch_vccz %s" % ok)
    spin(A, top)
    A(ok + ":")


def poll_flags(A, voff, vtmp, starget, stem, preissued=None):
    top, ok = A.label(stem), A.label(stem + "_ok")
    if preissued is not None:
        A("s_waitcnt vmcnt(%d)" % preissued)
        A("v_cmp_gt_u32 vcc, s%d, %s" % (starget, v(vtmp)))
        A("s_cbranch_vccz %s" % ok)
    A(top + ":")
    A("buffer_load_dword %s, %s, s[%d:%d], 0 offen sc1" % (v(vtmp), v(voff), SRD_WS, SRD_WS + 3))
    A("s_waitcnt vmcnt(0)")
    A("v_cmp_gt_u32 vcc, s%d, %s" % (starget, v(vtmp)))
    A("s_cbranch_vccz %s" % ok)
    spin(A, top)
    A(ok + ":")


def local_store(A, text):
    sl, dn = A.label("sl"), A.label("sd")
    A("s_cmp_lg_u32 s%d, 0" % S_SLOW)
    A("s_cbranch_scc1 %s" % sl)
    for t in text:
        A(t)
    A("s_branch %s" % dn)
    A(sl + ":")
    for t in text:
        A(t + " sc1")
    A(dn + ":")


def set_flag(A, voff, vtmp, sval):
    A("v_mov_b32 %s, s%d" % (v(vtmp), sval))
    A("buffer_store_dword %s, %s, s[%d:%d], 0 offen sc1" % (v(vtmp), v(voff), SRD_WS, SRD_WS + 3))


def flag_addr_own(A, vd, vlane, sid):
    A("s_lshl_b32 s%d, s%d, 7" % (S_T, sid))
    A("s_lshl_b32 s%d, s%d, 2" % (S_T + 1, S_W))
    A("s_add_u32 s%d, s%d, s%d" % (S_T, S_T, S_T + 1))
    A("v_mov_b32 %s, 0x%x" % (v(vd), OOB))
    A("v_mov_b32 v255, s%d" % S_T)
    A("v_cmp_eq_u32 vcc, 0, %s" % v(vlane))
    A("v_cndmask_b32 %s, %s, v255, vcc" % (v(vd), v(vd)))


def stamp(A, cfg, name):
    if cfg.get("stamps"):
        if isinstance(name, int):
            A("s_memrealtime s[%d:%d]" % (68 + 2 * name, 69 + 2 * name))
        elif name in cfg["sp"]:
            k = cfg["sp"].index(name) % 6
            A("%s s[%d:%d]" % ("s_memtime" if cfg.get("cyc") else "s_memrealtime", 68 + 2 * k, 69 + 2 * k))


def stamp_flush(A, cfg, vr, n=6, first=0, sreg=None):
    if not cfg.get("stamps"):
        return
    st = S_STEP if sreg is None else sreg
    skip = A.label("st")
    A("s_waitcnt lgkmcnt(0)")
    A("s_cmp_lg_u32 s%d, 0" % S_W)
    A("s_cbranch_scc1 %s" % skip)
    A("s_lshl_b32 s4, s%d, 12" % S_IDX)
    A("s_lshl_b32 s5, s%d, 5" % st)
    A("s_add_u32 s4, s4, s5")
    A("s_add_u32 s4, s4, 0x%x" % (STAMPS + 4 * first))
    A("v_mbcnt_lo_u32_b32 %s, -1, 0" % v(vr + 1))
    A("v_lshlrev_b32 %s, 2, %s" % (v(vr + 1), v(vr + 1)))
    for k in range(n):
        A("v_writelane_b32 %s, s%d, %d" % (v(vr), 68 + 2 * k, k))
    A("s_mov_b64 exec, %d" % ((1 << n) - 1))
    A("buffer_store_dword %s, %s, s[%d:%d], s4 offen" % (v(vr), v(vr + 1), SRD_WS, SRD_WS + 3))
    A("s_mov_b64 exec, -1")
    A(skip + ":")


def load_weights(A, units, pool, temps, ldsbuf=None, maxfly=30, wait_every=2):
    first = {}
    for n, u in enumerate(units):
        for d, _, _ in u["outs"]:
            if not isinstance(d, tuple) and d < 256:
                first.setdefault(d, n)
    busy = set()
    land = {}
    issued = 0
    tk = [0]

    def alloc(n, cnt):
        for r in sorted(pool, reverse=True):
            if r % 2:
                continue
            rr = range(r, r + cnt)
            if all((x in pool) and (x not in busy) and first.get(x, 1 << 30) > n for x in rr):
                return r
        return None

    def issue(n):
        wd = units[n]["width"]
        r = alloc(n, 2 * wd)
        if r is None:
            return False
        busy.update(range(r, r + 2 * wd))
        land[n] = r
        for k in range(2):
            for t in units[n]["loads"][k](r + k * wd):
                A(t)
        return True

    waited = -1
    for n, u in enumerate(units):
        while issued < len(units) and issued - n < maxfly and issue(issued):
            issued += 1
        assert issued > n, "loader ran out of landing registers"
        if waited < n:
            waited = min(n + wait_every - 1, issued - 1)
            A("s_waitcnt vmcnt(%d)" % (2 * (issued - 1 - waited)))
        r, wd = land[n], u["width"]
        for d, c, sel in u["outs"]:
            if isinstance(d, tuple):
                dv = ldsbuf + d[1]
            elif d >= 256:
                dv = temps[tk[0] % len(temps)]
                tk[0] += 1
            else:
                dv = d
            A("v_perm_b32 %s, %s, %s, s%d" % (v(dv), v(r + wd + c), v(r + c), sel))
            if not isinstance(d, tuple) and d >= 256:
                A("v_accvgpr_write_b32 %s, %s" % (W(d), v(dv)))
        for t in u.get("post", ()):
            A(t)
        busy.difference_update(range(r, r + 2 * wd))


def bload(width, voff, srd_, off):
    op = "buffer_load_dword" if width == 1 else "buffer_load_dwordx%d" % width

    def f(reg):
        return ["s_mov_b32 s%d, 0x%x" % (S_T, off),
                "%s %s, %s, s[%d:%d], s%d offen" % (op, v(reg, width), v(voff), srd_, srd_ + 3, S_T)]
    return f


def smf_row(j):
    return 32 * (j // 4) + 8 * (j % 2) + 2 * ((j % 4) // 2)
```

```python
from common import *

WSR = "s[%d:%d]" % (SRD_WS, SRD_WS + 3)
AR_ = "s[%d:%d]" % (SRD_A, SRD_A + 3)
BR_ = "s[%d:%d]" % (SRD_B, SRD_B + 3)


def flag_lanes(A, vd, vt, sbase, ncu, per32=None):
    A("v_lshrrev_b32 %s, 2, v0" % v(vt))
    A("v_min_u32 %s, %d, %s" % (v(vt), ncu - 1, v(vt)))
    A("v_add_u32 %s, s%d, %s" % (v(vt), sbase, v(vt)))
    A("v_lshlrev_b32 %s, 7, %s" % (v(vt), v(vt)))
    A("v_and_b32 %s, 3, v0" % v(vd))
    A("v_lshl_add_u32 %s, %s, 2, %s" % (v(vd), v(vd), v(vt)))


def dma_block(A, vaddr, s_lds, s_glob, n, t0=S_T):
    out = []
    for k in range(n):
        grp = []
        if k % 4 == 0:
            grp.append("s_add_u32 s%d, s%d, %d" % (t0, s_lds, 1024 * k))
            grp.append("s_add_u32 s%d, s%d, %d" % (t0 + 1, s_glob, 1024 * k))
            grp.append("s_mov_b32 m0, s%d" % t0)
        grp.append("buffer_load_dwordx4 %s, %s, s%d offen offset:%d sc1 lds" % (v(vaddr), WSR, t0 + 1, 1024 * (k % 4)))
        out.append(grp)
    return out


def role_qkv(A, cfg, census):
    V_L16, V_FL, V_FX, V_DM, V_OT, V_OV, V_RD = 2, 3, 4, 5, 6, 7, 8
    ACC, FR, T = 16, 48, 96
    DEPTH = 4
    A("L_role_qkv:")
    A("s_sub_u32 s80, s%d, 128" % S_IDX)
    A("s_lshr_b32 s80, s80, 5")
    A("s_lshl_b32 s80, s80, 4")
    A("s_and_b32 s64, s%d, 15" % S_IDX)
    A("s_add_u32 s80, s80, s64")
    A("s_and_b32 s66, s%d, 1" % S_W)
    A("s_lshr_b32 s67, s%d, 1" % S_W)
    A("s_cmp_lt_u32 s%d, 2" % S_W)
    srd_sel(A, SRD_A, P_WQ, P_WK, 1024 * 4096 * 2)
    srd(A, SRD_B, P_WV, 1024 * 4096 * 2)
    A("s_cmp_eq_u32 s66, 0")
    A("s_cselect_b32 s%d, s%d, s%d" % (S_SUB, S_SELLO, S_SELHI))
    A("v_lshrrev_b32 v22, 4, v0")
    A("v_lshlrev_b32 v22, 16, v22")
    A("v_and_b32 v23, 15, v0")
    A("v_lshl_add_u32 v22, v23, 2, v22")
    A("s_lshl_b32 s64, s80, 7")
    A("s_lshl_b32 s65, s66, 6")
    A("s_add_u32 s65, s65, s64")
    A("v_add_u32 v20, s65, v22")
    A("s_lshl_b32 s65, s67, 6")
    A("s_add_u32 s65, s65, s64")
    A("v_add_u32 v21, s65, v22")
    flag_addr_own(A, V_FL, 0, S_IDX)
    A("v_lshlrev_b32 %s, 4, v0" % v(V_L16))
    A("s_lshl_b32 s81, s%d, 13" % S_W)
    A("v_add_u32 %s, s81, %s" % (v(V_DM), v(V_L16)))
    A("v_and_b32 v23, 1, v0")
    A("v_bfe_u32 v24, v0, 1, 1")
    A("v_lshl_add_u32 v23, v24, 5, v23")
    A("v_add_u32 v23, %d, v23" % id_aux(0))
    A("v_lshlrev_b32 v23, 7, v23")
    A("s_lshl_b32 s64, s%d, 2" % S_W)
    A("s_add_u32 s64, s64, 64")
    A("v_add_u32 %s, s64, v23" % v(V_FX))
    A("s_and_b32 s64, s80, 1")
    A("s_lshl_b32 s65, s64, 1")
    A("s_add_u32 s65, s65, s66")
    A("s_lshl_b32 s65, s65, 10")
    A("s_cmp_lt_u32 s%d, 2" % S_W)
    A("s_cselect_b32 s68, 16384, 0")
    A("s_add_u32 s65, s65, s68")
    A("v_add_u32 %s, s65, %s" % (v(V_OT), v(V_L16)))
    A("s_lshl_b32 s65, s64, 2")
    A("s_add_u32 s65, s65, s%d" % S_W)
    A("s_lshl_b32 s65, s65, 10")
    A("s_add_u32 s65, s65, 8192")
    A("v_add_u32 %s, s65, %s" % (v(V_OV), v(V_L16)))
    A("s_lshr_b32 s82, s80, 1")
    A("s_mul_i32 s82, s82, 24576")
    A("s_add_u32 s82, s82, 0x%x" % KVQ)
    A("s_add_u32 s83, s82, 4096")

    def home(kk, t):
        n = 3 * kk + t
        return 256 + 4 * n if n < 64 else 128 + 4 * (n - 64)
    units = []
    for kk in range(32):
        for j in range(4):
            row = 32 * kk + 2 * j
            units.append(dict(width=1, loads=[bload(1, 20, SRD_A, (row + u) * 8192) for u in range(2)],
                              outs=[(home(kk, 0) + j, 0, S_SELLO), (home(kk, 1) + j, 0, S_SELHI)]))
            units.append(dict(width=1, loads=[bload(1, 21, SRD_B, (row + u) * 8192) for u in range(2)],
                              outs=[(home(kk, 2) + j, 0, S_SUB)]))
    load_weights(A, units, set(range(24, 256)), [16, 17, 18, 19], wait_every=4)
    census(A)

    def dma(sl, sg):
        a_ = dma_block(A, V_DM, sl, sg, 8)
        return a_
    A("s_mov_b32 s%d, 0" % S_STEP)
    A("s_mov_b32 s84, 0x%x" % XN)
    A("s_mov_b32 s85, s81")
    A("s_mov_b32 s86, 1")
    poll_flags(A, V_FX, T, 86, "fx0")
    A("s_add_u32 s87, s84, 32768")
    A("s_add_u32 s88, s85, 32768")
    for g in dma(85, 84) + dma(88, 87):
        for t in g:
            A(t)
    A("v_mov_b32 %s, %s" % (v(V_RD), v(V_L16)))
    A("s_waitcnt vmcnt(0)")

    A("L_qkv_top:")
    A("s_waitcnt vmcnt(3)")
    A("s_barrier")
    stamp(A, cfg, "pa")
    A("s_add_u32 s84, s84, 0x10000")
    A("s_xor_b32 s85, s85, 0x10000")
    A("s_add_u32 s87, s84, 32768")
    A("s_add_u32 s88, s85, 32768")
    A("s_add_u32 s86, s%d, 3" % S_STEP)
    A("s_lshr_b32 s86, s86, 1")
    A("s_min_u32 s86, s86, 32")
    A("v_xor_b32 %s, 0x2000, %s" % (v(V_FX), v(V_FX)))
    A("buffer_load_dword %s, %s, %s, 0 offen sc1" % (v(T), v(V_FX), WSR))
    L = Cnt(A, "lgkmcnt", 15)

    def rd(kk):
        for tt in range(2):
            L.issue(kk, "ds_read_b128 %s, %s offset:%d" % (v(FR + 8 * (kk % DEPTH) + 4 * tt, 4), v(V_RD), 32768 * tt + 1024 * kk))
    for kk in range(DEPTH - 1):
        rd(kk)
    groups = dma(85, 84) + dma(88, 87)
    for kk in range(32):
        L.wait(kk)
        f = FR + 8 * (kk % DEPTH)
        n = 0
        for t in range(3):
            for tt in range(2):
                d = ACC + 8 * t + 4 * tt
                c = "0" if kk == 0 else v(d, 4)
                wv, xv = W(home(kk, t), 4), v(f + 4 * tt, 4)
                A("v_mfma_f32_16x16x32_bf16 %s, %s, %s, %s" % ((v(d, 4), wv, xv, c) if t < 2 else (v(d, 4), xv, wv, c)))
                n += 1
                if n == 1 and kk + DEPTH - 1 < 32:
                    rd(kk + DEPTH - 1)
                if n == 4 and kk >= 8 and groups:
                    for t_ in groups.pop(0):
                        A(t_)
        if kk == 6:
            poll_flags(A, V_FX, T, 86, "fx", preissued=0)
            set_flag(A, V_FL, T + 1, S_STEP)
    assert not groups
    stamp(A, cfg, "pb")
    for tt in range(2):
        for r in range(4):
            A("v_cvt_pk_bf16_f32 %s, %s, %s" % (v(T + 4 * tt + r), v(ACC + 4 * tt + r), v(ACC + 8 + 4 * tt + r)))
        A("buffer_store_dwordx4 %s, %s, %s, s%d offen sc1" % (v(T + 4 * tt, 4), v(V_OT), WSR, 82 + tt))
    for r in range(4):
        A("v_cvt_pk_bf16_f32 %s, %s, %s" % (v(T + 8 + r), v(ACC + 16 + 2 * r), v(ACC + 17 + 2 * r)))
    A("buffer_store_dwordx4 %s, %s, %s, s82 offen sc1" % (v(T + 8, 4), v(V_OV), WSR))
    stamp(A, cfg, "pc")
    stamp_flush(A, cfg, T + 12, 3)
    A("v_xor_b32 %s, 0x10000, %s" % (v(V_RD), v(V_RD)))
    A("s_add_u32 s82, s82, %d" % (32 * 24576))
    A("s_add_u32 s83, s83, %d" % (32 * 24576))
    A("s_add_u32 s%d, s%d, 1" % (S_STEP, S_STEP))
    A("s_cmp_lt_u32 s%d, 64" % S_STEP)
    A("s_cbranch_scc1 L_qkv_top")
    A("s_waitcnt vmcnt(0)")
    set_flag(A, V_FL, T + 14, S_STEP)
    A("s_endpgm")


def role_proj(A, cfg, census, name):
    wo = name == "wo"
    NK = 32 if wo else 28
    V_L16, V_FL, V_FP, V_IN, V_RW, V_RR, V_OUT = 2, 3, 4, 5, 6, 7, 8
    ACC, FR, T = 16, 64, 48
    A("L_role_%s:" % name)
    A("s_bfe_u32 s80, s%d, 0x10004" % S_IDX)
    A("s_and_b32 s81, s%d, 15" % S_IDX)
    srd(A, SRD_A, P_WO if wo else P_WD, (4096 if wo else 3584) * 2048)
    A("v_lshrrev_b32 v22, 5, v0")
    A("v_lshlrev_b32 v20, 14, v22")
    A("v_and_b32 v23, 31, v0")
    A("v_lshl_add_u32 v20, v23, 2, v20")
    A("s_lshl_b32 s82, s80, 2")
    A("s_add_u32 s82, s82, s%d" % S_W)
    A("s_mul_i32 s64, s82, %d" % (NK * 16 * 2048))
    A("s_lshl_b32 s65, s81, 7")
    A("s_add_u32 s64, s64, s65")
    A("v_add_u32 v20, s64, v20")
    flag_addr_own(A, V_FL, 0, S_IDX)
    A("v_lshlrev_b32 %s, 4, v0" % v(V_L16))
    A("s_mul_i32 s64, s82, %d" % (NK * 1024))
    A("v_add_u32 %s, s64, %s" % (v(V_IN), v(V_L16)))
    if wo:
        A("s_lshl_b32 s64, s80, 5")
        A("s_lshl_b32 s65, s%d, 2" % S_W)
        A("s_add_u32 s64, s64, s65")
        flag_lanes(A, V_FP, 24, 64, 4)
    else:
        A("s_lshr_b32 s64, s82, 1")
        A("s_lshl_b32 s64, s64, 5")
        A("s_and_b32 s65, s82, 1")
        A("s_mul_i32 s65, s65, 7")
        A("s_add_u32 s64, s64, s65")
        A("s_add_u32 s64, s64, %d" % id_f1(0))
        flag_lanes(A, V_FP, 24, 64, 7)
    A("v_lshlrev_b32 v24, 10, v22")
    A("v_lshl_add_u32 v24, v23, 4, v24")
    A("s_lshl_b32 s64, s%d, 13" % S_W)
    A("v_add_u32 %s, s64, v24" % v(V_RW))
    A("s_lshl_b32 s64, s%d, 11" % S_W)
    A("v_add_u32 %s, s64, v24" % v(V_RR))
    A("s_lshl_b32 s65, s81, 13")
    A("s_add_u32 s64, s64, s65")
    A("s_lshl_b32 s65, s80, 17")
    A("s_add_u32 s64, s64, s65")
    A("v_add_u32 %s, s64, v24" % v(V_OUT))
    units = []
    for ks in range(NK):
        for j in range(4):
            if wo:
                rows = [16 * ks + 2 * j + u for u in range(2)]
            else:
                rows = [64 * (ks // 4) + 32 * ((ks % 4) // 2) + ks % 2 + 16 * (s_ // 4) + 2 * (s_ % 4) for s_ in (2 * j, 2 * j + 1)]
            units.append(dict(width=1, loads=[bload(1, 20, SRD_A, r * 2048) for r in rows],
                              outs=[(256 + 8 * ks + j, 0, S_SELLO), (256 + 8 * ks + 4 + j, 0, S_SELHI)]))
    load_weights(A, units, set(range(24, 256)), [16, 17, 18, 19], wait_every=4)
    census(A)
    A("s_mov_b32 s%d, 0" % S_STEP)
    A("s_mov_b32 s84, 0x%x" % (OX if wo else ACT))
    A("s_mov_b32 s85, 0x%x" % (P1 if wo else P2))
    A("L_%s_top:" % name)
    A("s_add_u32 s86, s%d, 1" % S_STEP)
    A("buffer_load_dword %s, %s, %s, 0 offen sc1" % (v(T), v(V_FP), WSR))
    A("s_waitcnt vmcnt(0)")
    set_flag(A, V_FL, T + 1, S_STEP)
    poll_flags(A, V_FP, T, 86, "fp", preissued=1)
    stamp(A, cfg, name + "a")
    for ks in range(NK):
        if ks % 4 == 0:
            A("s_add_u32 s64, s84, %d" % (1024 * ks))
        A("buffer_load_dwordx4 %s, %s, %s, s64 offen offset:%d sc1" % (v(FR + 4 * ks, 4), v(V_IN), WSR, 1024 * (ks % 4)))
    for ks in range(NK):
        A("s_waitcnt vmcnt(%d)" % (NK - 1 - ks))
        for f in range(2):
            d = v(ACC + 16 * f, 16)
            A("v_mfma_f32_32x32x16_bf16 %s, %s, %s, %s" % (d, a(8 * ks + 4 * f, 4), v(FR + 4 * ks, 4), "0" if ks == 0 else d))
    stamp(A, cfg, name + "b")
    A("s_barrier")
    for f in range(2):
        for j in range(4):
            A("ds_write_b128 %s, %s offset:%d" % (v(V_RW), v(ACC + 16 * f + 4 * j, 4), 2048 * j + 512 * f))
    A("s_waitcnt lgkmcnt(0)")
    A("s_barrier")
    for f in range(2):
        for k in range(4):
            A("ds_read_b128 %s, %s offset:%d" % (v(ACC + 16 * f + 4 * k, 4), v(V_RR), 8192 * k + 512 * f))
    for f in range(2):
        b = ACC + 16 * f
        A("s_waitcnt lgkmcnt(%d)" % (4 * (1 - f)))
        for (x, y) in ((0, 4), (8, 12), (0, 8)):
            for r in (0, 2):
                A("v_pk_add_f32 %s, %s, %s" % (v(b + x + r, 2), v(b + x + r, 2), v(b + y + r, 2)))
        A("buffer_store_dwordx4 %s, %s, %s, s85 offen offset:%d sc1" % (v(b, 4), v(V_OUT), WSR, 512 * f))
    stamp(A, cfg, name + "c")
    stamp_flush(A, cfg, T + 2, 3)
    A("s_add_u32 s84, s84, %d" % (0x40000 if wo else 224 * 1024))
    A("s_add_u32 s85, s85, 0x40000")
    A("s_add_u32 s%d, s%d, 1" % (S_STEP, S_STEP))
    A("s_cmp_lt_u32 s%d, 64" % S_STEP)
    A("s_cbranch_scc1 L_%s_top" % name)
    A("s_waitcnt vmcnt(0)")
    set_flag(A, V_FL, T + 1, S_STEP)
    A("s_endpgm")


def role_f1(A, cfg, census):
    V_L16, V_FL, V_FH, V_DM, V_RD = 2, 3, 4, 5, 6
    ACC, FR, T = 16, 48, 96
    DEPTH = 6
    A("L_role_f1:")
    A("s_sub_u32 s80, s%d, 128" % S_IDX)
    A("s_lshr_b32 s80, s80, 5")
    A("s_mul_i32 s80, s80, 14")
    A("s_and_b32 s64, s%d, 15" % S_IDX)
    A("s_add_u32 s80, s80, s64")
    A("s_and_b32 s66, s%d, 1" % S_W)
    A("s_lshr_b32 s67, s%d, 1" % S_W)
    A("s_cmp_eq_u32 s66, 0")
    A("s_cselect_b32 s%d, s%d, s%d" % (S_SUB, S_SELLO, S_SELHI))
    A("v_lshrrev_b32 v22, 5, v0")
    A("v_mul_u32_u24 v22, %d, v22" % (8 * 7168))
    A("v_and_b32 v23, 15, v0")
    A("v_lshl_add_u32 v22, v23, 2, v22")
    A("s_lshl_b32 s64, s80, 7")
    A("s_lshl_b32 s65, s67, 6")
    A("s_add_u32 s64, s64, s65")
    A("v_add_u32 v22, s64, v22")
    A("v_mov_b32 v23, 0")
    A("v_and_b32 v24, 16, v0")
    A("v_cmp_eq_u32 vcc, 0, v24")
    A("v_mov_b32 v20, s%d" % P_WU)
    A("v_mov_b32 v21, s%d" % (P_WU + 1))
    A("v_mov_b32 v24, s%d" % P_WG)
    A("v_mov_b32 v25, s%d" % (P_WG + 1))
    A("v_cndmask_b32 v20, v20, v24, vcc")
    A("v_cndmask_b32 v21, v21, v25, vcc")
    A("v_lshl_add_u64 v[20:21], v[20:21], 0, v[22:23]")
    A("s_mov_b32 s88, 7168")
    A("s_mov_b32 s89, 0")
    A("s_mov_b32 s90, %d" % (9 * 7168))
    A("s_mov_b32 s91, 0")
    flag_addr_own(A, V_FL, 0, S_IDX)
    A("v_lshlrev_b32 %s, 4, v0" % v(V_L16))
    A("s_lshl_b32 s81, s%d, 14" % S_W)
    A("v_add_u32 %s, s81, %s" % (v(V_DM), v(V_L16)))
    A("v_and_b32 v23, 1, v0")
    A("v_bfe_u32 v24, v0, 1, 1")
    A("v_lshl_add_u32 v23, v24, 5, v23")
    A("v_add_u32 v23, %d, v23" % id_aux(0))
    A("v_lshlrev_b32 v23, 7, v23")
    A("s_lshl_b32 s64, s%d, 2" % S_W)
    A("v_add_u32 %s, s64, v23" % v(V_FH))
    A("s_lshl_b32 s82, s80, 2")
    A("s_add_u32 s82, s82, s%d" % S_W)
    A("s_lshl_b32 s82, s82, 10")
    A("s_add_u32 s82, s82, 0x%x" % ACT)

    def gl(last, final):
        def f(reg):
            out = ["global_load_dword %s, v[20:21], off" % v(reg)]
            if not final:
                out.append("v_lshl_add_u64 v[20:21], v[20:21], 0, s[%d:%d]" % ((90, 91) if last else (88, 89)))
            return out
        return f
    units = []
    for ks in range(64):
        for j in range(4):
            units.append(dict(width=1, loads=[gl(False, False), gl(j == 3, j == 3 and ks == 63)],
                              outs=[(256 + 4 * ks + j, 0, S_SUB)]))
    load_weights(A, units, set(range(24, 256)), [16, 17, 18, 19], wait_every=4)
    census(A)
    A("s_mov_b32 s%d, 0" % S_STEP)
    A("s_mov_b32 s84, 0x%x" % HN)
    A("s_mov_b32 s92, 0xc0135761")
    A("s_mov_b32 s93, 0xbdd2d3e8")
    A("L_f1_top:")
    A("s_add_u32 s86, s%d, 1" % S_STEP)
    A("buffer_load_dword %s, %s, %s, 0 offen sc1" % (v(T), v(V_FH), WSR))
    A("s_waitcnt vmcnt(0)")
    set_flag(A, V_FL, T + 1, S_STEP)
    poll_flags(A, V_FH, T, 86, "fh", preissued=1)
    stamp(A, cfg, "ga")
    A("s_and_b32 s85, s%d, 1" % S_STEP)
    A("s_lshl_b32 s85, s85, 16")
    A("v_add_u32 %s, s85, %s" % (v(V_RD), v(V_L16)))
    A("s_add_u32 s85, s85, s81")
    for g in dma_block(A, V_DM, 85, 84, 16):
        for t in g:
            A(t)
    L = Cnt(A, "lgkmcnt", 15)
    order = [16 * w_ + 4 * q + i for q in range(4) for w_ in range(4) for i in range(4)]

    def rd(n):
        L.issue(n, "ds_read_b128 %s, %s offset:%d" % (v(FR + 4 * (n % DEPTH), 4), v(V_RD), 1024 * order[n]))
    issued = 0
    for n in range(64):
        while issued < 64 and issued < n + DEPTH - 1 + (1 if n == 0 else 0) and issued < n + DEPTH:
            if issued % 16 == 0:
                if issued > n + 2:
                    break
                A("s_waitcnt vmcnt(%d)" % (12 - 4 * (issued // 16)))
                A("s_barrier")
            rd(issued)
            issued += 1
        L.wait(n)
        d = v(ACC, 16)
        A("v_mfma_f32_32x32x16_bf16 %s, %s, %s, %s" % (d, a(4 * order[n], 4), v(FR + 4 * (n % DEPTH), 4), "0" if n == 0 else d))
    stamp(A, cfg, "gb")
    for i in range(8):
        A("v_mul_f32 %s, %s, %s" % (v(T + i), v(ACC + i), v(ACC + i)))
    A("v_mov_b32 %s, s92" % v(T + 8))
    for i in range(8):
        A("v_fma_f32 %s, %s, s93, %s" % (v(T + i), v(T + i), v(T + 8)))
    for i in range(8):
        A("v_mul_f32 %s, %s, %s" % (v(T + i), v(T + i), v(ACC + i)))
    for i in range(8):
        A("v_exp_f32 %s, %s" % (v(T + i), v(T + i)))
    for i in range(8):
        A("v_add_f32 %s, 1.0, %s" % (v(T + i), v(T + i)))
    for i in range(8):
        A("v_rcp_f32 %s, %s" % (v(T + i), v(T + i)))
    for i in range(8):
        A("v_mul_f32 %s, %s, %s" % (v(T + i), v(T + i), v(ACC + i)))
    for i in range(8):
        A("v_mul_f32 %s, %s, %s" % (v(T + i), v(T + i), v(ACC + 8 + i)))
    for i in range(4):
        A("v_cvt_pk_bf16_f32 %s, %s, %s" % (v(T + 12 + i), v(T + 2 * i), v(T + 2 * i + 1)))
    A("buffer_store_dwordx4 %s, %s, %s, s82 offen sc1" % (v(T + 12, 4), v(V_L16), WSR))
    stamp(A, cfg, "gc")
    stamp_flush(A, cfg, T + 16, 3)
    A("s_add_u32 s84, s84, 0x10000")
    A("s_add_u32 s82, s82, %d" % (224 * 1024))
    A("s_add_u32 s%d, s%d, 1" % (S_STEP, S_STEP))
    A("s_cmp_lt_u32 s%d, 64" % S_STEP)
    A("s_cbranch_scc1 L_f1_top")
    A("s_waitcnt vmcnt(0)")
    set_flag(A, V_FL, T + 1, S_STEP)
    A("s_endpgm")


def role_aux(A, cfg, census):
    V_FL, V_X, V_XN, V_P, V_HN, V_FP, V_ST, V_SR = 2, 3, 4, 5, 6, 7, 8, 9
    XR, PA, PB, F, T, OUT = 16, 32, 64, 96, 128, 144
    A("L_role_aux:")
    A("s_sub_u32 s80, s%d, 128" % S_IDX)
    A("s_lshr_b32 s80, s80, 5")
    A("s_lshl_b32 s80, s80, 1")
    A("s_and_b32 s64, s%d, 1" % S_IDX)
    A("s_add_u32 s80, s80, s64")
    A("s_and_b32 s81, s80, 3")
    srd(A, SRD_A, P_X, 2048 * 2048)
    flag_addr_own(A, V_FL, 0, S_IDX)
    A("v_and_b32 v20, 7, v0")
    A("v_lshrrev_b32 v21, 3, v0")
    A("s_lshl_b32 s64, s%d, 5" % S_W)
    A("v_add_u32 v22, s64, v21")
    A("v_lshlrev_b32 v23, 11, v20")
    A("v_lshl_add_u32 %s, v22, 4, v23" % v(V_X))
    A("v_lshlrev_b32 v23, 4, v20")
    A("v_lshl_add_u32 %s, v22, 8, v23" % v(V_XN))
    A("s_lshl_b32 s64, s81, 7")
    A("v_add_u32 v23, s64, v23")
    A("v_lshl_add_u32 %s, v22, 10, v23" % v(V_P))
    A("v_lshl_add_u32 %s, v22, 9, v23" % v(V_HN))
    A("v_lshlrev_b32 %s, 5, v20" % v(V_SR))
    A("s_lshl_b32 s64, s%d, 3" % S_W)
    A("v_add_u32 %s, s64, %s" % (v(V_ST), v(V_SR)))
    A("v_bfe_u32 v23, v0, 4, 1")
    A("v_bfe_u32 v24, v0, 2, 2")
    A("v_lshl_add_u32 v23, v23, 4, v24")
    A("s_cmp_lt_u32 s80, 4")
    A("s_cselect_b32 s64, 64, 96")
    A("s_lshl_b32 s65, s%d, 2" % S_W)
    A("s_add_u32 s64, s64, s65")
    A("v_add_u32 v23, s64, v23")
    A("v_lshlrev_b32 v23, 7, v23")
    A("v_and_b32 v24, 3, v0")
    A("v_lshl_add_u32 %s, v24, 2, v23" % v(V_FP))
    A("s_mov_b32 s90, 0xffff0000")
    A("s_mov_b32 s91, 0x3b800000")
    A("s_mov_b32 s92, 0x3a800000")
    A("s_mov_b32 s93, 0x3727c5ac")
    A("s_mov_b32 s94, 0x43800000")
    census(A)

    def xsum(r):
        A("v_add_f32_dpp %s, %s, %s row_ror:8 row_mask:0xf bank_mask:0xf" % (v(r), v(r), v(r)))
        for sw in ("v_permlane16_swap_b32", "v_permlane32_swap_b32"):
            A("v_mov_b32 %s, %s" % (v(r + 1), v(r)))
            A("%s %s, %s" % (sw, v(r), v(r + 1)))
            A("v_add_f32 %s, %s, %s" % (v(r), v(r), v(r + 1)))

    def tree(dst, sq):
        for k in range(4):
            if sq:
                A("v_mul_f32 %s, %s, %s" % (v(dst + k), v(F + k), v(F + k)))
            else:
                A("v_add_f32 %s, %s, %s" % (v(dst + k), v(F + k), v(F + 4 + k)))
        for i in range(4 if sq else 8, 32):
            if sq:
                A("v_fmac_f32 %s, %s, %s" % (v(dst + i % 4), v(F + i), v(F + i)))
            else:
                A("v_add_f32 %s, %s, %s" % (v(dst + i % 4), v(dst + i % 4), v(F + i)))
        A("v_add_f32 %s, %s, %s" % (v(dst), v(dst), v(dst + 1)))
        A("v_add_f32 %s, %s, %s" % (v(dst + 2), v(dst + 2), v(dst + 3)))
        A("v_add_f32 %s, %s, %s" % (v(dst), v(dst), v(dst + 2)))

    def unpack(src):
        for d in range(16):
            A("v_lshlrev_b32 %s, 16, %s" % (v(F + 2 * d), v(src + d)))
            A("v_and_b32 %s, s90, %s" % (v(F + 2 * d + 1), v(src + d)))

    def layernorm():
        tree(T, False)
        xsum(T)
        A("v_mul_f32 %s, s91, %s" % (v(T + 4), v(T)))
        for i in range(32):
            A("v_sub_f32 %s, %s, %s" % (v(F + i), v(F + i), v(T + 4)))
        tree(T, True)
        xsum(T)
        A("v_mov_b32 %s, %s" % (v(T + 5), v(T)))
        A("ds_write_b64 %s, %s" % (v(V_ST), v(T + 4, 2)))
        A("s_waitcnt lgkmcnt(0)")
        A("s_barrier")
        A("ds_read_b128 %s, %s" % (v(T + 8, 4), v(V_SR)))
        A("ds_read_b128 %s, %s offset:16" % (v(T + 12, 4), v(V_SR)))
        A("v_xor_b32 %s, 256, %s" % (v(V_ST), v(V_ST)))
        A("v_xor_b32 %s, 256, %s" % (v(V_SR), v(V_SR)))
        A("s_waitcnt lgkmcnt(0)")
        A("v_add_f32 %s, %s, %s" % (v(T), v(T + 8), v(T + 10)))
        A("v_add_f32 %s, %s, %s" % (v(T + 1), v(T + 12), v(T + 14)))
        A("v_add_f32 %s, %s, %s" % (v(T), v(T), v(T + 1)))
        A("v_mul_f32 %s, 0x3e800000, %s" % (v(T), v(T)))
        A("v_add_f32 %s, %s, %s" % (v(T + 1), v(T + 9), v(T + 11)))
        A("v_add_f32 %s, %s, %s" % (v(T + 2), v(T + 13), v(T + 15)))
        A("v_add_f32 %s, %s, %s" % (v(T + 1), v(T + 1), v(T + 2)))
        A("v_mov_b32 %s, 0" % v(T + 2))
        for k in range(4):
            A("v_sub_f32 %s, %s, %s" % (v(T + 3), v(T + 8 + 2 * k), v(T)))
            A("v_fmac_f32 %s, %s, %s" % (v(T + 2), v(T + 3), v(T + 3)))
        A("v_fma_f32 %s, %s, s94, %s" % (v(T + 1), v(T + 2), v(T + 1)))
        A("v_mov_b32 %s, s93" % v(T + 2))
        A("v_fma_f32 %s, %s, s92, %s" % (v(T + 1), v(T + 1), v(T + 2)))
        A("v_rsq_f32 %s, %s" % (v(T + 1), v(T + 1)))
        A("v_sub_f32 %s, %s, %s" % (v(T + 4), v(T + 4), v(T)))
        A("v_mul_f32 %s, %s, %s" % (v(T + 4), v(T + 4), v(T + 1)))
        for d in range(16):
            for e in range(2):
                A("v_fma_f32 %s, %s, %s, %s" % (v(F + 2 * d + e), v(F + 2 * d + e), v(T + 1), v(T + 4)))
            A("v_cvt_pk_bf16_f32 %s, %s, %s" % (v(OUT + d), v(F + 2 * d), v(F + 2 * d + 1)))

    def xload(srd_, so, sc):
        for j in range(4):
            A("buffer_load_dwordx4 %s, %s, %s, s%d offen offset:%d%s" % (v(XR + 4 * j, 4), v(V_X), srd_, so, 128 * j, sc))

    A("s_lshl_b32 s84, s80, 14")
    A("s_mov_b32 s%d, 0" % S_STEP)
    xload(AR_, 84, "")
    A("s_waitcnt vmcnt(0)")
    A("L_ln1_top:")
    A("s_waitcnt vmcnt(4)")
    unpack(XR)
    A("s_lshr_b32 s64, s84, 16")
    A("s_lshl_b32 s64, s64, 16")
    A("s_bfe_u32 s65, s84, 0x1000f")
    A("s_lshl_b32 s65, s65, 15")
    A("s_add_u32 s64, s64, s65")
    A("s_bfe_u32 s65, s84, 0x1000e")
    A("s_lshl_b32 s65, s65, 7")
    A("s_add_u32 s64, s64, s65")
    A("s_add_u32 s85, s64, 0x%x" % XN)
    A("s_add_u32 s86, s85, 4096")
    A("s_add_u32 s84, s84, 0x20000")
    xload(AR_, 84, "")
    layernorm()
    A("s_waitcnt vmcnt(4)")
    A("v_mov_b32 %s, s%d" % (v(T), S_STEP))
    A("buffer_store_dword %s, %s, %s, 0 offen offset:64 sc1" % (v(T), v(V_FL), WSR))
    A("s_waitcnt vmcnt(1)")
    for j in range(4):
        A("buffer_store_dwordx4 %s, %s, %s, s%d offen offset:%d sc1" % (v(OUT + 4 * j, 4), v(V_XN), WSR, 85 + j // 2, 2048 * (j % 2)))
    A("s_add_u32 s%d, s%d, 1" % (S_STEP, S_STEP))
    A("s_cmp_lt_u32 s%d, 32" % S_STEP)
    A("s_cbranch_scc1 L_ln1_top")
    A("s_waitcnt vmcnt(0)")
    A("v_mov_b32 %s, s%d" % (v(T), S_STEP))
    A("buffer_store_dword %s, %s, %s, 0 offen offset:64 sc1" % (v(T), v(V_FL), WSR))

    def ploads(sp):
        for g in range(2):
            for j in range(4):
                A("s_add_u32 s64, s%d, %d" % (sp, 0x20000 * g + 8192 * j))
                for f in range(2):
                    A("buffer_load_dwordx4 %s, %s, %s, s64 offen offset:%d sc1" % (v((PA, PB)[g] + 8 * j + 4 * f, 4), v(V_P), WSR, 512 * f))

    def addp():
        for j in range(4):
            for r in range(4):
                for f in range(2):
                    i = 8 * j + 4 * f + r
                    A("v_add_f32 %s, %s, %s" % (v(PA + i), v(PA + i), v(PB + i)))
                    A("v_add_f32 %s, %s, %s" % (v(F + 8 * j + 2 * r + f), v(F + 8 * j + 2 * r + f), v(PA + i)))

    A("s_mov_b32 s%d, 0" % S_STEP)
    A("s_lshl_b32 s84, s81, 14")
    A("s_cmp_ge_u32 s80, 4")
    A("s_cbranch_scc1 L_fin")
    A("s_mov_b32 s87, 0x%x" % P1)
    A("s_mov_b32 s88, 0x%x" % HN)
    A("L_ln2_top:")
    A("s_add_u32 s86, s%d, 1" % S_STEP)
    A("buffer_load_dword %s, %s, %s, 0 offen sc1" % (v(T), v(V_FP), WSR))
    A("s_waitcnt vmcnt(0)")
    set_flag(A, V_FL, T + 1, S_STEP)
    xload(AR_, 84, "")
    poll_flags(A, V_FP, T, 86, "fa", preissued=5)
    stamp(A, cfg, "la")
    ploads(87)
    A("s_waitcnt vmcnt(16)")
    unpack(XR)
    A("s_waitcnt vmcnt(0)")
    addp()
    for d in range(16):
        A("v_cvt_pk_bf16_f32 %s, %s, %s" % (v(XR + d), v(F + 2 * d), v(F + 2 * d + 1)))
    A("s_add_u32 s85, s84, 0x%x" % HB)
    for j in range(4):
        A("buffer_store_dwordx4 %s, %s, %s, s85 offen offset:%d sc1" % (v(XR + 4 * j, 4), v(V_X), WSR, 128 * j))
    unpack(XR)
    layernorm()
    for j in range(4):
        A("s_add_u32 s64, s88, %d" % (4096 * j))
        A("buffer_store_dwordx4 %s, %s, %s, s64 offen sc1" % (v(OUT + 4 * j, 4), v(V_HN), WSR))
    stamp(A, cfg, "lb")
    stamp_flush(A, cfg, T + 2, 2)
    A("s_add_u32 s84, s84, 0x10000")
    A("s_add_u32 s87, s87, 0x40000")
    A("s_add_u32 s88, s88, 0x10000")
    A("s_add_u32 s%d, s%d, 1" % (S_STEP, S_STEP))
    A("s_cmp_lt_u32 s%d, 64" % S_STEP)
    A("s_cbranch_scc1 L_ln2_top")
    A("s_waitcnt vmcnt(0)")
    set_flag(A, V_FL, T + 1, S_STEP)
    A("s_endpgm")
    A("L_fin:")
    srd(A, SRD_B, P_OUT, 2048 * 2048)
    A("s_mov_b32 s87, 0x%x" % P2)
    A("L_fin_top:")
    A("s_add_u32 s86, s%d, 1" % S_STEP)
    poll_flags(A, V_FP, T, 86, "fb")
    stamp(A, cfg, "la")
    A("s_add_u32 s85, s84, 0x%x" % HB)
    xload(WSR, 85, " sc1")
    ploads(87)
    A("s_waitcnt vmcnt(16)")
    unpack(XR)
    A("s_waitcnt vmcnt(0)")
    addp()
    for j in range(4):
        for d in range(4 * j, 4 * j + 4):
            A("v_cvt_pk_bf16_f32 %s, %s, %s" % (v(OUT + d), v(F + 2 * d), v(F + 2 * d + 1)))
        A("buffer_store_dwordx4 %s, %s, %s, s84 offen offset:%d" % (v(OUT + 4 * j, 4), v(V_X), BR_, 128 * j))
    stamp(A, cfg, "lb")
    stamp_flush(A, cfg, T + 2, 2)
    A("s_add_u32 s84, s84, 0x10000")
    A("s_add_u32 s87, s87, 0x40000")
    A("s_add_u32 s%d, s%d, 1" % (S_STEP, S_STEP))
    A("s_cmp_lt_u32 s%d, 64" % S_STEP)
    A("s_cbranch_scc1 L_fin_top")
    A("s_endpgm")


ROLES = dict(qkv=role_qkv, f1=role_f1, aux=role_aux,
             wo=lambda A, cfg, census: role_proj(A, cfg, census, "wo"),
             f2=lambda A, cfg, census: role_proj(A, cfg, census, "f2"))
```

```python
import sys
from common import *
import chain
try:
    import stream
except ImportError:
    stream = None

WSR = "s[%d:%d]" % (SRD_WS, SRD_WS + 3)
DBR = "s[%d:%d]" % (SRD_DBG, SRD_DBG + 3)
TICK_LANES = [0, 16, 32, 36, 40, 44, 48, 52]


def make_census(cfg):
    def census(A):
        done, top = A.label("cd"), A.label("ct")
        A("s_cmp_lg_u32 s%d, 0" % S_CENS)
        A("s_cbranch_scc1 %s" % done)
        A("v_mbcnt_lo_u32_b32 v17, -1, 0")
        A("v_mbcnt_hi_u32_b32 v17, -1, v17")
        A("v_lshlrev_b32 v17, 2, v17")
        A(top + ":")
        A("buffer_load_dword v18, v17, %s, 0 offen sc1" % DBR)
        A("s_waitcnt vmcnt(0)")
        A("v_readlane_b32 s64, v18, 60")
        A("s_cmp_eq_u32 s64, 256")
        ok = A.label("co")
        A("s_cbranch_scc1 %s" % ok)
        spin(A, top)
        A(ok + ":")
        if not cfg.get("force_slow"):
            m = sum(1 << l for l in TICK_LANES)
            A("v_cmp_ne_u32 vcc, 32, v18")
            A("s_mov_b32 s64, 0x%x" % (m & 0xffffffff))
            A("s_mov_b32 s65, 0x%x" % (m >> 32))
            A("s_and_b64 s[64:65], s[64:65], vcc")
            A("s_cbranch_scc1 L_recensus")
        A(done + ":")
    return census


def prologue(A, cfg, census):
    A("s_cmp_ge_u32 s2, 256")
    A("s_cbranch_scc1 L_end")
    A("s_load_dwordx16 s[8:23], s[0:1], 0")
    A("s_load_dwordx8 s[24:31], s[0:1], 64")
    A("s_load_dwordx4 s[32:35], s[0:1], 96")
    A("s_getreg_b32 s%d, hwreg(HW_REG_XCC_ID)" % S_XCC)
    A("v_lshrrev_b32 v1, 6, v0")
    A("s_and_b32 s%d, s%d, 7" % (S_XCC, S_XCC))
    A("v_readfirstlane_b32 s%d, v1" % S_W)
    A("s_mov_b32 s%d, 0x05040100" % S_SELLO)
    A("s_mov_b32 s%d, 0x07060302" % S_SELHI)
    A("s_mov_b32 s%d, -2" % S_CLAMP)
    A("s_mov_b32 s%d, 0" % S_SPIN)
    A("s_mov_b32 s%d, 0" % S_CENS)
    A("s_mov_b32 s%d, %d" % (S_SLOW, 1 if cfg.get("force_slow") else 0))
    A("s_mov_b32 s%d, 0" % S_STEP)
    A("s_lshl_b32 s64, s%d, 6" % S_XCC)
    A("s_lshl_b32 s65, s%d, 4" % S_XCC)
    A("s_add_u32 s65, s65, 96")
    A("s_cmp_lt_u32 s%d, 2" % S_XCC)
    A("s_cselect_b32 s64, s64, s65")
    A("v_mov_b32 v3, s64")
    A("v_mov_b32 v2, 1")
    A("s_mul_i32 s64, s2, 3072")
    A("s_add_u32 s64, s64, 0x%x" % RING_P)
    A("v_lshl_add_u32 v8, v0, 4, s64")
    A("s_lshl_b32 s65, s2, 7")
    A("s_sub_u32 s65, s65, %d" % (192 * 16))
    A("v_lshl_add_u32 v9, v0, 4, s65")
    A("v_mov_b32 v10, 0x%x" % OOB)
    A("v_cmp_gt_u32 vcc, 200, v0")
    A("v_cndmask_b32 v9, v10, v9, vcc")
    A("v_cmp_gt_u32 vcc, 192, v0")
    A("v_cndmask_b32 v8, v9, v8, vcc")
    for r in range(4):
        A("v_cndmask_b32 v%d, 0, -1, vcc" % (4 + r))
    A("s_waitcnt lgkmcnt(0)")
    srd(A, SRD_WS, P_WS, WS_BYTES)
    srd(A, SRD_DBG, P_DBG, 256)
    A("s_cmp_lg_u32 s%d, 0" % S_W)
    A("s_cbranch_scc1 L_notick")
    A("s_mov_b64 exec, 1")
    A("buffer_atomic_add v2, v3, %s, 0 offen sc0" % DBR)
    A("s_mov_b64 exec, -1")
    A("L_notick:")
    A("buffer_store_dwordx4 v[4:7], v8, %s, 0 offen sc1" % WSR)
    A("v_mov_b32 v3, 0")
    A("s_waitcnt vmcnt(0)")
    A("s_cmp_lg_u32 s%d, 0" % S_W)
    A("s_cbranch_scc1 L_notick2")
    A("s_mov_b64 exec, 1")
    A("ds_write_b32 v3, v2")
    A("s_mov_b64 exec, -1")
    A("s_waitcnt lgkmcnt(0)")
    A("L_notick2:")
    A("s_barrier")
    A("ds_read_b32 v2, v3")
    A("s_cmp_lg_u32 s%d, 0" % S_W)
    A("s_cbranch_scc1 L_notick3")
    A("v_mov_b32 v4, 1")
    A("v_mov_b32 v5, 240")
    A("s_mov_b64 exec, 1")
    A("buffer_atomic_add v4, v5, %s, 0 offen" % DBR)
    A("s_mov_b64 exec, -1")
    A("L_notick3:")
    A("s_waitcnt lgkmcnt(0)")
    A("v_readfirstlane_b32 s%d, v2" % S_TICK)
    A("s_barrier")
    if cfg.get("force_slow"):
        A("s_mov_b32 s%d, s2" % S_IDX)
        A("s_branch L_dispatch")
    else:
        A("s_lshl_b32 s%d, s%d, 5" % (S_IDX, S_XCC))
        A("s_add_u32 s%d, s%d, s%d" % (S_IDX, S_IDX, S_TICK))
        A("s_cmp_lt_u32 s%d, 32" % S_TICK)
        A("s_cbranch_scc1 L_dispatch")
        census(A)
        A("L_recensus:")
        A("s_mov_b32 s%d, s%d" % (S_IDX, S_TICK))
        for x in range(7):
            A("v_readlane_b32 s64, v18, %d" % TICK_LANES[x])
            A("s_cmp_gt_u32 s%d, %d" % (S_XCC, x))
            A("s_cselect_b32 s64, s64, 0")
            A("s_add_u32 s%d, s%d, s64" % (S_IDX, S_IDX))
        A("s_mov_b32 s%d, 1" % S_SLOW)
        A("s_mov_b32 s%d, 1" % S_CENS)
        A("s_waitcnt vmcnt(0) lgkmcnt(0)")
        A("s_barrier")
    A("L_dispatch:")
    A("v_mbcnt_lo_u32_b32 v0, -1, 0")
    A("v_mbcnt_hi_u32_b32 v0, -1, v0")
    stamp(A, cfg, 0)
    stamp_flush(A, cfg, 2, 1, 7)
    on = cfg["roles"]
    tgt = lambda r: "L_role_" + r if r in on else "L_role_off"
    A("s_cmp_ge_u32 s%d, 64" % S_IDX)
    A("s_cbranch_scc1 L_disp2")
    A("s_bitcmp1_b32 s%d, 4" % S_IDX)
    A("s_cbranch_scc1 %s" % tgt("vo"))
    A("s_branch %s" % tgt("qk"))
    A("L_disp2:")
    A("s_cmp_lt_u32 s%d, 96" % S_IDX)
    A("s_cbranch_scc1 %s" % tgt("wo"))
    A("s_cmp_lt_u32 s%d, 128" % S_IDX)
    A("s_cbranch_scc1 %s" % tgt("f2"))
    A("s_and_b32 s64, s%d, 31" % S_IDX)
    A("s_cmp_lt_u32 s64, 16")
    A("s_cbranch_scc1 %s" % tgt("qkv"))
    A("s_cmp_lt_u32 s64, 30")
    A("s_cbranch_scc1 %s" % tgt("f1"))
    A("s_branch %s" % tgt("aux"))


def role_off(A, census):
    A("L_role_off:")
    census(A)
    flag_addr_own(A, 2, 0, S_IDX)
    A("s_mov_b32 s70, 1000")
    set_flag(A, 2, 3, 70)
    A("buffer_store_dword v3, v2, %s, 0 offen offset:64 sc1" % WSR)
    A("s_endpgm")


def generate(cfg):
    A = Asm()
    census = make_census(cfg)
    prologue(A, cfg, census)
    A("L_giveup:")
    if cfg.get("debug"):
        A("v_mov_b32 v2, 1")
        A("v_mov_b32 v3, 244")
        A("s_mov_b64 exec, 1")
        A("buffer_atomic_add v2, v3, %s, 0 offen" % DBR)
    A("L_end:")
    A("s_endpgm")
    allroles = dict(qk=chain.role_qk, vo=chain.role_vo)
    if stream:
        allroles.update(stream.ROLES)
    for r in cfg["roles"]:
        allroles[r](A, cfg, census)
    if len(cfg["roles"]) < 7:
        role_off(A, census)
    n = A.fix_hazards()
    ref = open("cdna_kernels/%s.s.ref" % NAME).read().split("\n")
    head = [l for l in ref if l.startswith(";") and "@launch" not in l and "Override" not in l and "grid=ceil" not in l]
    k = NAME + "_kernel"
    out = "\n".join(head) + "\n; @launch grid=(256,1,1) block=(256,1,1) lds=163840\n"
    out += '.amdgcn_target "amdgcn-amd-amdhsa--gfx950"\n.text\n.globl %s\n.p2align 8\n.type %s,@function\n%s:\n' % (k, k, k)
    out += A.text()
    out += '''.section .rodata,"a"
.p2align 6
.amdhsa_kernel %s
  .amdhsa_next_free_vgpr 512
  .amdhsa_next_free_sgpr 102
  .amdhsa_accum_offset 256
  .amdhsa_group_segment_fixed_size 0
  .amdhsa_kernarg_size 112
  .amdhsa_user_sgpr_count 2
  .amdhsa_user_sgpr_kernarg_segment_ptr 1
  .amdhsa_system_sgpr_workgroup_id_x 1
  .amdhsa_float_denorm_mode_32 3
.end_amdhsa_kernel
''' % k
    return out, n


if __name__ == "__main__":
    cfg = dict(roles=["qk", "vo", "wo", "f2", "qkv", "f1", "aux"])
    for kv in sys.argv[2:]:
        k_, v_ = kv.split("=")
        cfg[k_] = v_.split(",") if k_ in ("roles", "sp") else int(v_)
    text, n = generate(cfg)
    open(sys.argv[1], "w").write(text)
    print("wrote %s: %d bytes, %d lines, %d nops inserted" % (sys.argv[1], len(text), text.count("\n"), n))
```

```python
import re

TRANS = ("v_exp_f32", "v_log_f32", "v_rcp_f32", "v_rsq_f32", "v_sqrt_f32", "v_sin_f32", "v_cos_f32")
_REG = re.compile(r"^-?\|?(?:abs\()?([vas])(?:(\d+)|\[(\d+):(\d+)\])\)?\|?$")


def regs_of(tok):
    tok = tok.strip()
    if tok in ("vcc", "vcc_lo", "vcc_hi"):
        return {"vcc"}
    if tok in ("exec", "exec_lo", "exec_hi"):
        return {"exec"}
    if tok == "m0":
        return {"m0"}
    m = _REG.match(tok)
    if not m:
        return set()
    k = m.group(1)
    if m.group(2) is not None:
        return {k + m.group(2)}
    return {k + str(i) for i in range(int(m.group(3)), int(m.group(4)) + 1)}


class Ins:
    __slots__ = ("text", "op", "rd", "wr", "kind", "passes", "srcc", "srcab", "states", "target", "dpp", "wide", "lanesel", "dotab")

    def __init__(self, text):
        self.text = text
        t = text.split(";")[0].strip()
        parts = t.split(None, 1)
        self.op = op = parts[0]
        rest = parts[1] if len(parts) > 1 else ""
        rest = re.sub(r"\s+[a-z_]+:\[[^\]]*\]", "", rest)
        ops = [o.strip() for o in rest.split(",")] if rest else []
        mods = ""
        if ops:
            last = ops[-1].split(None, 1)
            if len(last) > 1:
                ops[-1], mods = last[0], last[1]
        R = [regs_of(o) for o in ops]
        self.rd, self.wr = set(), set()
        self.kind = "other"
        self.passes = 0
        self.srcc, self.srcab = set(), set()
        self.states = 1
        self.target = None
        self.dpp = "_dpp" in op
        self.wide = False
        self.lanesel = set()
        self.dotab = (R[1] | R[2]) if op.startswith("v_dot") else set()
        U = lambda xs: set().union(*xs) if xs else set()
        if op.startswith("v_mfma") or op.startswith("v_smfmac"):
            self.kind = "mfma"
            self.passes = 8 if "32x32" in op else 4
            self.wr = R[0]
            if op.startswith("v_smfmac"):
                self.srcc = R[0]
                self.srcab = R[1] | R[2] | R[3]
            else:
                self.srcc = R[3]
                self.srcab = R[1] | R[2]
            self.rd = self.srcc | self.srcab
        elif op.startswith("v_"):
            self.kind = "trans" if op.replace("_e32", "").replace("_e64", "") in TRANS else "valu"
            if "permlane" in op:
                self.kind = "permlane"
                self.wr = R[0] | R[1]
                self.rd = R[0] | R[1]
            elif op.startswith(("v_readfirstlane", "v_readlane")):
                self.kind = "readlane"
                self.wr = R[0]
                self.rd = U(R[1:])
                self.lanesel = U(R[2:])
            elif op.startswith(("v_add_co", "v_sub_co", "v_addc_co", "v_subb_co")):
                self.wr = R[0] | R[1]
                self.rd = U(R[2:])
            elif op.startswith("v_cmpx"):
                self.wr = R[0] | {"exec"}
                self.rd = U(R[1:])
            elif op == "v_nop":
                pass
            else:
                self.wr = R[0]
                self.rd = U(R[1:])
                if op.startswith(("v_fmac", "v_dot2c", "v_mac", "v_writelane")) or self.dpp or "sdwa" in op:
                    self.rd |= R[0]
        elif op.startswith(("buffer_", "global_")):
            self.kind = "vmem"
            if "load" in op:
                if " lds" in " " + mods or "load_lds" in op:
                    self.rd = U(R) | {"m0"}
                    self.kind = "dma"
                else:
                    self.wr = R[0]
                    self.rd = U(R[1:])
                    if "d16" in op:
                        self.rd |= R[0]
            elif "atomic" in op:
                self.rd = U(R)
                if "sc0" in mods:
                    self.wr = R[0]
            else:
                self.rd = U(R)
                if "x3" in op or "x4" in op:
                    self.wide = True
                    self.srcab = R[0] if op.startswith("buffer_") else R[1]
        elif op.startswith("ds_"):
            self.kind = "ds"
            if "read" in op or "permute" in op or "swizzle" in op:
                self.wr = R[0]
                self.rd = U(R[1:])
            else:
                self.rd = U(R)
        elif op.startswith("s_"):
            self.kind = "salu"
            if op == "s_nop":
                self.states = int(ops[0], 0) + 1
            elif op.startswith(("s_cbranch", "s_branch")):
                self.target = ops[0]
                if "vcc" in op:
                    self.rd = {"vcc"}
            elif op.startswith(("s_cmp", "s_waitcnt", "s_barrier", "s_sleep", "s_setprio", "s_endpgm", "s_bitcmp")):
                self.rd = U(R)
            elif op.startswith(("s_load", "s_memtime", "s_memrealtime")):
                self.kind = "smem"
                self.wr = R[0]
                self.rd = U(R[1:])
            else:
                self.wr = R[0]
                self.rd = U(R[1:])
                if "saveexec" in op:
                    self.wr |= {"exec"}
                    self.rd |= {"exec"}
        else:
            raise ValueError("unknown instruction: " + text)


VALU_KINDS = ("valu", "trans", "permlane", "readlane")


def isv(r):
    return r[0] in "va" and r != "vcc"


def need(p, c):
    n = 0
    pv = p.kind in VALU_KINDS
    cv = c.kind in VALU_KINDS
    if p.kind == "mfma":
        big = 12 if p.passes == 8 else 8
        if c.kind == "mfma":
            if p.wr & c.srcab:
                n = max(n, big)
            if p.wr & (c.srcc | c.wr):
                if not (p.wr == c.srcc and p.passes == c.passes and c.wr == c.srcc):
                    n = max(n, big - 2)
        elif cv or c.kind in ("vmem", "ds", "dma"):
            if p.wr & (c.rd | c.wr):
                n = max(n, big)
            if p.srcc & c.wr:
                n = max(n, 7 if p.passes == 8 else 3)
    if pv:
        w = {r for r in p.wr if isv(r)}
        sw = p.wr - w
        if c.kind == "mfma" and w & c.rd:
            n = max(n, 2)
        if c.kind == "mfma" and "exec" in sw:
            n = max(n, 4)
        if p.op.startswith("v_dot") and w & (c.rd | c.wr) and not (c.op == p.op and not (w & c.dotab)):
            n = max(n, 3)
        if p.kind == "trans" and cv and c.kind != "trans" and w & c.rd:
            n = max(n, 1)
        if "sdwa" in p.op or ("op_sel" in p.text and not p.op.startswith("v_pk_")):
            if cv and w & (c.rd | c.wr):
                n = max(n, 1)
        if (c.kind == "permlane" or c.dpp) and w & c.rd:
            n = max(n, 2)
        if c.kind == "readlane" and w & c.rd:
            n = max(n, 1)
        if sw:
            if cv and sw & c.rd:
                n = max(n, 2)
            if c.kind == "readlane" and sw & c.lanesel:
                n = max(n, 4)
            if c.kind in ("vmem", "dma") and sw & c.rd:
                n = max(n, 5)
            if c.kind in ("salu", "smem") and sw & c.rd and not c.op.startswith("s_cbranch"):
                n = max(n, 1)
            if "exec" in sw and (c.kind in ("readlane", "permlane")):
                n = max(n, 4)
            if "exec" in sw and c.dpp:
                n = max(n, 5)
    if p.kind == "salu" and "m0" in p.wr and c.kind == "dma":
        n = max(n, 1)
    if p.wide and p.srcab & c.wr:
        n = max(n, 2 if cv else 1)
    return n


class Asm:
    def __init__(self):
        self.items = []
        self.uid = 0

    def __call__(self, text):
        for line in text.split("\n"):
            line = line.strip()
            if not line or line.startswith(";"):
                continue
            if line.endswith(":"):
                self.items.append(("l", line[:-1]))
            elif line.startswith("."):
                self.items.append(("r", line))
            else:
                self.items.append(("i", Ins(line)))

    def label(self, stem):
        self.uid += 1
        return "L_%s_%d" % (stem, self.uid)

    def fix_hazards(self):
        LIM = 13
        total = 0
        while True:
            items = self.items
            n = len(items)
            branches = {}
            for i, (k, x) in enumerate(items):
                if k == "i" and x.target:
                    branches.setdefault(x.target, []).append(i)
            ins_at = {}
            for i, (k, c) in enumerate(items):
                if k != "i" or c.op in ("s_nop", "s_waitcnt", "s_barrier", "s_branch"):
                    continue
                worst = 0
                stack = [(i - 1, 0)]
                seen = {}
                while stack:
                    j, d = stack.pop()
                    while j >= 0 and d < LIM:
                        if seen.get(j, 99) <= d:
                            break
                        seen[j] = d
                        k2, p = items[j]
                        if k2 == "l":
                            for b in branches.get(p, ()):
                                stack.append((b - 1, d + 1))
                            j -= 1
                            jj = j
                            while jj >= 0 and items[jj][0] != "i":
                                if items[jj][0] == "l":
                                    break
                                jj -= 1
                            if jj >= 0 and items[jj][0] == "i" and items[jj][1].op in ("s_branch", "s_endpgm"):
                                break
                            continue
                        if k2 == "r":
                            j -= 1
                            continue
                        r = need(p, c) - d
                        if r > worst:
                            worst = r
                        d += p.states
                        j -= 1
                if worst > 0:
                    ins_at[i] = worst
            if not ins_at:
                return total
            out = []
            last_fix = -99
            for i, it in enumerate(items):
                if i in ins_at and i - last_fix > LIM:
                    out.append(("i", Ins("s_nop %d" % (ins_at[i] - 1))))
                    total += 1
                    last_fix = i
                out.append(it)
            self.items = out

    def text(self):
        out = []
        for k, x in self.items:
            if k == "i":
                out.append(x.text)
            elif k == "l":
                out.append(x + ":")
            else:
                out.append(x)
        return "\n".join(out) + "\n"


def v(a, n=1):
    return "v%d" % a if n == 1 else "v[%d:%d]" % (a, a + n - 1)


def a(i, n=1):
    return "a%d" % i if n == 1 else "a[%d:%d]" % (i, i + n - 1)


def s(i, n=1):
    return "s%d" % i if n == 1 else "s[%d:%d]" % (i, i + n - 1)


def W(i, n=1):
    if i >= 256:
        return a(i - 256, n)
    assert i + n <= 256
    return v(i, n)
```

```python
from common import *

WSR = "s[%d:%d]" % (SRD_WS, SRD_WS + 3)
S_HI16 = S_R + 18
S_SCALE = S_R + 19
LU, RR, ACC, AR = 16, 48, 64, 80


def smf(A, d, a_, b, idx):
    A("v_smfmac_f32_16x16x64_bf16 %s, %s, %s, %s" % (v(d, 4), v(a_, 4), b, v(idx)))


def chain_setup(A):
    A("s_lshr_b32 s80, s%d, 5" % S_IDX)
    A("s_and_b32 s81, s%d, 15" % S_IDX)
    A("s_lshl_b32 s82, s80, 4")
    A("s_add_u32 s82, s82, s81")
    A("s_mov_b32 s%d, 0xffff0000" % S_HI16)
    A("v_and_b32 v1, 63, v0")


def smf_lane_rows(A, vd, vt, sh):
    A("v_lshrrev_b32 %s, 5, v1" % v(vd))
    A("v_lshlrev_b32 %s, %d, %s" % (v(vd), sh, v(vd)))
    A("v_bfe_u32 %s, v1, 4, 1" % v(vt))
    A("v_lshl_add_u32 %s, %s, 2, %s" % (v(vd), v(vt), v(vd)))


ORDER = [0, 4, 8, 12, 1, 5, 9, 13, 2, 6, 10, 14, 3, 7, 11, 15]
L_ID = 161024


def mem_row(ks, j):
    return 256 * (ks // 4) + 16 * (ks % 4) + 128 * (j // 4) + 8 * (j % 2) + 2 * ((j % 4) // 2)


def gather_addr(A, vd, shw, shg):
    A("v_lshrrev_b32 v21, 4, v1")
    A("v_lshlrev_b32 v21, %d, v21" % shg)
    A("v_and_b32 v23, 15, v1")
    A("v_lshl_add_u32 v21, v23, 4, v21")
    A("s_lshl_b32 s64, s%d, %d" % (S_W, shw))
    A("v_add_u32 %s, s64, v21" % v(vd))


def smf_idx(A, vd, vt):
    A("v_and_b32 %s, 8, v1" % v(vt))
    A("v_mov_b32 %s, 0x4444" % v(vd))
    A("v_mov_b32 v255, 0xeeee")
    A("v_cmp_ne_u32 vcc, 0, %s" % v(vt))
    A("v_cndmask_b32 %s, %s, v255, vcc" % (v(vd), v(vd)))


def ring_consts(A):
    A("s_lshl_b32 s84, s80, 14")
    A("s_xor_b32 s85, s84, 0x4000")
    A("s_add_u32 s84, s84, 0x%x" % (RING_P + 0x8000))
    A("s_add_u32 s85, s85, 0x%x" % RING_P)


def make_identity(A, d):
    A("v_lshrrev_b32 v21, 4, v1")
    A("v_lshlrev_b32 v21, 2, v21")
    A("v_and_b32 v23, 15, v1")
    A("v_sub_u32 v21, v23, v21")
    for c in range(2):
        A("v_cmp_eq_u32 vcc, %d, v21" % (2 * c))
        A("v_cndmask_b32 v24, 0, 1.0, vcc")
        A("v_cmp_eq_u32 vcc, %d, v21" % (2 * c + 1))
        A("v_cndmask_b32 v25, 0, 1.0, vcc")
        A("v_perm_b32 %s, v25, v24, s%d" % (v(d + c), S_SELHI))


class Gather:
    def __init__(self, A, cfg, pre, L, vgl, vstw, tmp, ident, LR, s_loc, s_rem, tail):
        self.__dict__.update(locals())

    def ld(self, dst, so, k):
        return "buffer_load_dwordx4 %s, %s, %s, s%d offen offset:%d sc1" % (v(dst + 4 * k, 4), v(self.vgl), WSR, so, 256 * k)

    def widen(self, src, k, first):
        for h in range(2):
            d = v(LU + 8 * k + 4 * h, 4)
            self.A("v_mfma_f32_16x16x16_bf16 %s, %s, %s, %s" % (d, v(self.ident, 2), v(src + 4 * k + 2 * h, 2), "0" if first else d))

    def pack(self, k):
        out = [(lambda c=c: self.A("v_cvt_pk_bf16_f32 %s, %s, %s" % (v(RR + 4 * k + c), v(LU + 8 * k + 2 * c), v(LU + 8 * k + 2 * c + 1))))
               for c in range(4)]
        out.append(lambda: self.L.issue(("st", k), "ds_write_b128 %s, %s offset:%d" % (v(self.vstw), v(RR + 4 * k, 4), 1024 * k)))
        return out

    def check(self, ks, cnt):
        A = self.A
        back, miss = A.label("gb"), A.label("gm")
        regs = range(RR + 4 * ks[0], RR + 4 * ks[-1] + 4)
        A("s_waitcnt vmcnt(%d)" % cnt)
        check_sent(A, regs, self.tmp)
        A("s_cbranch_vccnz %s" % miss)
        A(back + ":")

        def out():
            A(miss + ":")
            poll_data(A, [self.ld(RR, self.s_rem, k) for k in range(ks[0], 4)], range(RR + 4 * ks[0], RR + 16), self.tmp, "gr")
            A("s_branch %s" % back)
        self.tail.append(out)

    def head(self, pre_local, idle, areads, shadow=()):
        A, cfg, pre = self.A, self.cfg, self.pre
        pre_local()
        top, ok = A.label("pl"), A.label("plk")
        A(top + ":")
        lp = cfg.get("lnp", 4)
        for k in range(lp):
            A(self.ld(self.LR, self.s_loc, k))
        A("s_waitcnt vmcnt(%d)" % (lp - 1))
        check_sent(A, range(self.LR, self.LR + 4), self.tmp)
        A("s_cbranch_vccnz %s" % ok)
        for k in range(lp, 4):
            A(self.ld(self.LR, self.s_loc, k))
        for k in range(4):
            A(self.ld(RR, self.s_rem, k))
        stamp(A, cfg, pre + "loc")
        back, miss = A.label("lb"), A.label("lm")
        A("s_waitcnt vmcnt(4)")
        check_sent(A, range(self.LR + 4, self.LR + 16), self.tmp)
        A("s_cbranch_vccnz %s" % miss)
        A(back + ":")

        def out0():
            A(ok + ":")
            if cfg.get("lsl") and pre == "q":
                A("s_sleep %d" % cfg["lsl"])
            spin(A, top)
            A(miss + ":")
            poll_data(A, [self.ld(self.LR, self.s_loc, k) for k in range(1, 4)], range(self.LR + 4, self.LR + 16), self.tmp, "lr")
            A("s_branch %s" % back)
        self.tail.append(out0)
        self.L.drain()
        for k in range(4):
            self.widen(self.LR, k, True)
        idle()
        chk, again = A.label("rc"), A.label("ra")
        A(chk + ":")
        A("s_waitcnt vmcnt(3)")
        check_sent(A, range(RR, RR + 4), self.tmp)
        A("s_cbranch_vccnz %s" % again)
        stamp(A, cfg, pre + "rem")

        def out():
            A(again + ":")
            for k in range(4):
                A(self.ld(RR, self.s_rem, k))
            spin(A, chk)
        self.tail.append(out)
        self.widen(RR, 0, False)
        n = 0
        for x in shadow:
            A(x)
            n += 1
        self.check([1], 2 + n)
        for f in self.pack(0):
            f()
        self.widen(RR, 1, False)
        self.L.drain()
        A("s_barrier")
        stamp(A, cfg, pre + "bar")
        areads()
        self.check([2, 3], n)
        self.widen(RR, 2, False)
        self.widen(RR, 3, False)


def softmax(A, S, T):
    A("v_max3_f32 %s, %s, %s, %s" % (v(T), v(S), v(S + 1), v(S + 2)))
    A("v_max3_f32 %s, %s, %s, %s" % (v(T + 1), v(S + 4), v(S + 5), v(S + 6)))
    A("v_max3_f32 %s, %s, %s, %s" % (v(T), v(T), v(S + 3), v(S + 7)))
    A("v_max3_f32 %s, %s, %s, %s" % (v(T + 1), v(T + 1), v(S + 8), v(S + 9)))
    A("v_max3_f32 %s, %s, %s, %s" % (v(T), v(T), v(S + 10), v(S + 11)))
    A("v_max_f32 %s, %s, %s" % (v(T), v(T), v(T + 1)))
    for sw in ("v_permlane16_swap_b32", "v_permlane32_swap_b32"):
        A("v_mov_b32 %s, %s" % (v(T + 1), v(T)))
        A("%s %s, %s" % (sw, v(T), v(T + 1)))
        A("v_max_f32 %s, %s, %s" % (v(T), v(T), v(T + 1)))
    A("v_mul_f32 %s, s%d, %s" % (v(T), S_SCALE, v(T)))
    for i in range(12):
        A("v_fma_f32 %s, %s, s%d, -%s" % (v(S + i), v(S + i), S_SCALE, v(T)))
        if i:
            A("v_exp_f32 %s, %s" % (v(S + i - 1), v(S + i - 1)))
    A("v_exp_f32 %s, %s" % (v(S + 11), v(S + 11)))
    for i in range(6):
        A("v_cvt_pk_bf16_f32 %s, %s, %s" % (v(S + i), v(S + 2 * i), v(S + 2 * i + 1)))


def mf32(A, d, a_, b, c):
    A("v_mfma_f32_16x16x32_bf16 %s, %s, %s, %s" % (v(d, 4), v(a_, 4), v(b, 4), "0" if c is None else v(c, 4)))


def mf16(A, d, a_, b):
    A("v_mfma_f32_16x16x16_bf16 %s, %s, %s, %s" % (v(d, 4), v(a_, 2), v(b, 2), v(d, 4)))


def role_qk(A, cfg, census):
    L_STAGE, L_KVQ, L_QM, L_KM, L_WL = 0, 16384, 40960, 43264, 46080
    NL = 14
    V_FL, V_FQ, V_GL, V_IDX, V_STW, V_ST, V_THR, V_WL, V_QW, V_QR, V_VM, V_OM, V_OX, V_VX, V_QX, V_NEG = range(16)
    WR = 92
    KX, VM, VX, S, T, Q, KM = 16, 48, 56, 64, 76, 80, 96
    OXR = 80
    tail = []

    def home(p, f):
        if f == 3 and p >= 2:
            return None
        n = 4 * p + f if p < 2 else 8 + 3 * (p - 2) + f
        return 256 + 8 * n if n < 32 else 112 + 8 * (n - 32)

    A("L_role_qk:")
    chain_setup(A)
    ring_consts(A)
    A("s_cmp_lt_u32 s%d, 2" % S_W)
    srd_sel(A, SRD_A, P_WQ, P_WK, 1024 * 4096 * 2)
    smf_lane_rows(A, 20, 21, 6)
    A("v_lshlrev_b32 v20, 13, v20")
    A("v_and_b32 v21, 15, v1")
    A("v_lshl_add_u32 v20, v21, 3, v20")
    A("s_and_b32 s64, s%d, 1" % S_W)
    A("s_lshl_b32 s64, s64, 7")
    A("s_lshl_b32 s65, s82, 8")
    A("s_add_u32 s64, s64, s65")
    A("v_add_u32 v20, s64, v20")
    make_identity(A, 26)
    A("v_lshlrev_b32 v21, 3, v1")
    A("v_add_u32 v21, %d, v21" % L_ID)
    A("ds_write_b64 v21, v[26:27]")
    flag_addr_own(A, 22, 1, S_IDX)
    smf_idx(A, V_IDX, 21)
    A("v_lshlrev_b32 %s, 4, v1" % v(V_ST))
    gather_addr(A, V_GL, 12, 10)
    A("v_add_u32 %s, s64, %s" % (v(V_STW), v(V_ST)))
    A("s_mul_i32 s64, s%d, %d" % (S_W, NL * 2048))
    A("s_add_u32 s64, s64, %d" % L_WL)
    A("v_add_u32 %s, s64, %s" % (v(V_WL), v(V_ST)))
    A("s_and_b32 s66, s%d, 1" % S_W)
    A("s_lshr_b32 s67, s%d, 1" % S_W)
    A("v_lshrrev_b32 v21, 5, v1")
    A("v_bfe_u32 v24, v1, 4, 1")
    A("v_lshl_add_u32 v21, v24, 1, v21")
    A("v_mul_u32_u24 v21, 576, v21")
    A("v_lshl_add_u32 v21, v23, 3, v21")
    A("s_lshl_b32 s64, s66, 7")
    A("s_mul_i32 s65, s67, %d" % (L_KM - L_QM))
    A("s_add_u32 s64, s64, s65")
    A("s_add_u32 s64, s64, %d" % L_QM)
    A("v_add_u32 %s, s64, v21" % v(V_QW))
    A("v_and_b32 v21, 7, v1")
    A("v_mul_u32_u24 v21, 288, v21")
    A("v_lshrrev_b32 v24, 4, v1")
    A("v_lshl_add_u32 %s, v24, 4, v21" % v(V_QR))
    A("s_lshl_b32 s64, s%d, 9" % S_W)
    A("v_add_u32 v21, s64, %s" % v(V_ST))
    A("v_mov_b32 v25, 0x%x" % OOB)
    A("v_cmp_gt_u32 vcc, 32, v1")
    A("v_cndmask_b32 %s, v25, v21, vcc" % v(V_VM))
    A("v_mov_b32 v26, 0xff800000")
    A("v_cndmask_b32 %s, v26, 0, vcc" % v(V_NEG))
    A("v_lshlrev_b32 v21, 7, v24")
    A("v_lshl_add_u32 v21, v23, 4, v21")
    A("v_add_u32 v21, s64, v21")
    A("v_cmp_gt_u32 vcc, 8, v23")
    A("v_cndmask_b32 %s, v25, v21, vcc" % v(V_OM))
    A("v_lshlrev_b32 v21, 9, v24")
    A("v_lshl_add_u32 v21, v23, 4, v21")
    A("s_lshl_b32 s64, s%d, 11" % S_W)
    A("s_lshl_b32 s65, s66, 8")
    A("s_add_u32 s65, s65, s64")
    A("v_add_u32 %s, s65, v21" % v(V_OX))
    A("s_add_u32 s64, s64, %d" % (L_KVQ + 8192))
    A("v_add_u32 %s, s64, %s" % (v(V_VX), v(V_ST)))
    A("s_lshl_b32 s64, s66, 12")
    A("s_add_u32 s64, s64, %d" % (L_KVQ + 16384))
    A("v_add_u32 %s, s64, %s" % (v(V_QX), v(V_ST)))
    A("s_lshl_b32 s64, s66, 4")
    A("v_add_u32 v21, s64, v23")
    A("v_lshlrev_b32 v24, 2, v24")
    A("v_sub_u32 %s, v21, v24" % v(V_THR))
    A("s_lshl_b32 s64, s82, 1")
    id_qkv_s(A, 64, 65)
    A("s_lshl_b32 s64, s64, 7")
    A("v_bfe_u32 v21, v1, 2, 1")
    A("v_lshlrev_b32 v21, 7, v21")
    A("v_and_b32 v23, 3, v1")
    A("v_lshl_add_u32 v21, v23, 2, v21")
    A("v_add_u32 %s, s64, v21" % v(V_FQ))
    A("v_mov_b32 %s, v22" % v(V_FL))
    A("s_mov_b32 s%d, 0x3e0293ee" % S_SCALE)
    A("s_lshl_b32 s86, s80, 15")
    A("s_lshl_b32 s64, s81, 11")
    A("s_add_u32 s86, s86, s64")
    A("s_add_u32 s86, s86, 0x%x" % RING_O)
    A("s_lshl_b32 s87, s82, 11")
    A("s_add_u32 s87, s87, 0x%x" % RING_V)
    A("s_mul_i32 s90, s%d, 6144" % S_W)
    A("s_mul_i32 s88, s82, 24576")
    A("s_add_u32 s88, s88, s90")
    A("s_add_u32 s88, s88, 0x%x" % KVQ)
    A("s_add_u32 s90, s90, %d" % L_KVQ)
    A("s_lshl_b32 s89, s82, 13")
    A("s_add_u32 s89, s89, 0x%x" % (OX - 0x40000))

    units = []
    for p in range(16):
        for j in range(8):
            row = mem_row(ORDER[p], j)
            outs = []
            for f in range(4):
                h = home(p, f)
                outs.append((("t", j) if h is None else h + j, f // 2, S_SELHI if f % 2 else S_SELLO))
            post = []
            if j % 4 == 3 and p >= 2:
                post = ["ds_write_b128 %s, %s offset:%d" % (v(V_WL), v(24 + j - 3, 4), (p - 2) * 2048 + (j // 4) * 1024)]
            units.append(dict(width=2, loads=[bload(2, 20, SRD_A, (row + u) * 8192) for u in range(2)], outs=outs, post=post))
    load_weights(A, units, set(range(32, 256)), [16, 17, 18, 19], ldsbuf=24, early=census.early)
    A("s_waitcnt lgkmcnt(0)")
    stamp(A, cfg, "qw")
    census(A)

    def kvq_dma():
        if cfg.get("nodma"):
            return
        A("s_mov_b32 m0, s90")
        for k in range(4):
            A("buffer_load_dwordx4 %s, %s, s88 offen offset:%d sc1 lds" % (v(V_ST), WSR, 1024 * k))
        A("s_add_u32 s64, s90, 4096")
        A("s_add_u32 s65, s88, 4096")
        A("s_mov_b32 m0, s64")
        for k in range(2):
            A("buffer_load_dwordx4 %s, %s, s65 offen offset:%d sc1 lds" % (v(V_ST), WSR, 1024 * k))
        A("s_add_u32 s88, s88, %d" % (32 * 24576))
    A("s_mov_b32 s%d, 0" % S_STEP)
    A("s_mov_b32 s96, 1")
    poll_flags(A, V_FQ, T + 3, 96, "fq0")
    kvq_dma()

    A("L_qk_top:")
    pstamp(A, cfg)
    A("s_and_b32 s64, s%d, 3" % S_STEP)
    A("s_lshl_b32 s64, s64, 16")
    A("s_add_u32 s91, s84, s64")
    A("s_add_u32 s92, s85, s64")
    A("s_add_u32 s93, s86, s64")
    A("s_add_u32 s94, s87, s64")
    A("s_xor_b32 s64, s64, 0x20000")
    A("s_add_u32 s95, s86, s64")
    A("s_add_u32 s96, s%d, 2" % S_STEP)
    A("s_min_u32 s96, s96, 64")
    for r in range(4):
        A("v_mov_b32 %s, -1" % v(ACC + r))
    local_store(A, ["buffer_store_dwordx4 %s, %s, %s, s95 offen" % (v(ACC, 4), v(V_OM), WSR)])

    L = Cnt(A, "lgkmcnt", 15)
    G = Gather(A, cfg, "q", L, V_GL, V_STW, 110, 108, WR, 91, 92, tail)

    def wread(p, hf):
        L.issue(("w", p), "ds_read_b128 %s, %s offset:%d" % (v(WR + 8 * (p % 2) + 4 * hf, 4), v(V_WL), (p - 2) * 2048 + hf * 1024))

    def aread(p):
        L.issue(("a", p), "ds_read_b128 %s, %s offset:%d" % (v(AR + 4 * (p % 3), 4), v(V_ST), L_STAGE + ORDER[p] * 1024))

    def pre_local():
        A("v_lshrrev_b32 v110, 1, %s" % v(V_ST))
        A("v_add_u32 v110, %d, v110" % L_ID)
        L.issue("id", "ds_read_b64 v[108:109], v110")

    def idle():
        for r in range(16):
            A("v_mov_b32 %s, 0" % v(ACC + r))
        A("v_xor_b32 v111, 2048, %s" % v(V_OX))
        for p in (2, 3):
            wread(p, 0)
            wread(p, 1)

    ox = ["buffer_store_dwordx4 %s, %s, %s, s89 offen sc1" % (v(OXR + 4 * p, 4), v(V_OX if p == 0 else 111), WSR) for p in range(2)]
    G.head(pre_local, idle, lambda: [aread(p) for p in range(3)], ox)
    extra = [("kx", KX + 4 * n, V_ST, L_KVQ + 1024 * n) for n in range(8)] + [("vx", VX + 4 * n, V_VX, 1024 * n) for n in range(2)]
    extra = [(lambda x=x: L.issue(x[0], "ds_read_b128 %s, %s offset:%d" % (v(x[1], 4), v(x[2]), x[3]))) for x in extra]
    vm_loads = ["buffer_load_dwordx4 %s, %s, %s, s94 offen sc1" % (v(VM, 4), v(V_VM), WSR),
                "buffer_load_dwordx4 %s, %s, %s, s94 offen sc1" % (v(VM + 4, 4), v(111), WSR)]
    other = {(14, 2): lambda: A("v_xor_b32 v111, 512, %s" % v(V_VM)),
             (15, 1): lambda: A(vm_loads[0]), (15, 2): lambda: A(vm_loads[1])}
    packs = G.pack(1) + G.pack(2) + G.pack(3)
    for _ in range(cfg.get("qpre", 0)):
        packs.pop(0)()
    q = []
    for p in range(16):
        L.wait(("a", p))
        stamp(A, cfg, "qp%d" % p)
        for f in range(4):
            h = home(p, f)
            if h is None:
                L.wait(("w", p))
                smf(A, ACC + 4 * f, AR + 4 * (p % 3), v(WR + 8 * (p % 2), 8), V_IDX)
            else:
                smf(A, ACC + 4 * f, AR + 4 * (p % 3), W(h, 8), V_IDX)
            if f == 3:
                if p in (1, 5):
                    assert p == 1 or not packs
                    L.wait(("st", 1 if p == 1 else 3))
                    A("s_barrier")
                if p + 3 < 16:
                    q.append(lambda p=p: aread(p + 3))
                if p >= 2 and p + 2 < 16:
                    q += [lambda p=p: wread(p + 2, 0), lambda p=p: wread(p + 2, 1)]
            if (p, f) in other:
                other[(p, f)]()
            elif q:
                q.pop(0)()
                if packs and p >= 2:
                    packs.pop(0)()
            elif packs:
                packs.pop(0)()
            elif extra and p >= 5:
                extra.pop(0)()
                if p >= 13 and extra:
                    extra.pop(0)()
    assert not extra and not q, (len(extra), len(q))
    stamp(A, cfg, "qmf")
    for u in range(2):
        for f in range(4):
            A("v_permlane32_swap_b32 %s, %s" % (v(ACC + 4 * f + u), v(ACC + 4 * f + u + 2)))
        for f in range(4):
            A("v_add_f32 %s, %s, %s" % (v(ACC + 4 * f + u), v(ACC + 4 * f + u), v(ACC + 4 * f + u + 2)))
        for c in range(2):
            A("v_cvt_pk_bf16_f32 %s, %s, %s" % (v(WR + 2 * u + c), v(ACC + 8 * c + u), v(ACC + 8 * c + 4 + u)))
        A("ds_write_b64 %s, %s offset:%d" % (v(V_QW), v(WR + 2 * u, 2), 288 * u))
    stamp(A, cfg, "qfold")
    A("v_mov_b32 %s, v111" % v(T + 2))
    for r in range(4):
        A("v_mov_b32 %s, %s" % (v(S + 8 + r), v(V_NEG)))
    vm_loads[1] = vm_loads[1].replace("v111", v(T + 2))
    A("s_waitcnt lgkmcnt(0)")
    A("s_barrier")
    stamp(A, cfg, "qbar2")
    L.q = []

    def img(dst, base, kk, tag):
        L.issue(tag, "ds_read_b128 %s, %s offset:%d" % (v(dst + 4 * kk, 4), v(V_QR), base + 64 * kk))

    A("s_cmp_eq_u32 s%d, 63" % S_STEP)
    A("s_cbranch_scc1 L_qk_last")
    for kk in range(4):
        img(Q, L_QM, kk, ("q", kk))
    for kk in range(4):
        img(KM, L_KM, kk, ("km", kk))
    back, miss = A.label("vb"), A.label("vm")
    chk = ["s_waitcnt vmcnt(0)",
           "v_max3_u32 %s, %s, %s, %s" % (v(T), v(VM), v(VM + 1), v(VM + 2)),
           "v_max3_u32 %s, %s, %s, %s" % (v(T), v(T), v(VM + 3), v(VM + 4)),
           "v_max3_u32 %s, %s, %s, %s" % (v(T), v(T), v(VM + 5), v(VM + 6)),
           "v_max_u32 %s, %s, %s" % (v(T), v(T), v(VM + 7)),
           "v_cmp_eq_u32 vcc, -1, %s" % v(T), "s_cbranch_vccnz %s\n%s:" % (miss, back)]

    def out(back=back, miss=miss):
        A(miss + ":")
        poll_data(A, vm_loads, range(VM, VM + 8), T, "pvm")
        A("s_branch %s" % back)
    tail.append(out)
    for kk in range(4):
        L.wait(("q", kk))
        mf32(A, S, KX + 4 * kk, Q + 4 * kk, None if kk == 0 else S)
        if kk:
            A(chk.pop(0))
        mf32(A, S + 4, KX + 16 + 4 * kk, Q + 4 * kk, None if kk == 0 else S + 4)
        if kk:
            A(chk.pop(0))
    for kk in range(4):
        L.wait(("km", kk))
        mf32(A, S + 8, KM + 4 * kk, Q + 4 * kk, S + 8)
        if chk:
            A(chk.pop(0))
        else:
            A("v_mov_b32 %s, 0x3f803f80" % v(80 + kk - 1))
    A("v_mov_b32 v83, 0x3f803f80")
    stamp(A, cfg, "qs")
    softmax(A, S, T)
    stamp(A, cfg, "qsm")
    O = 84
    mf32(A, O + 8, 80, S, None)
    mf32(A, O, VX, S, None)
    mf16(A, O + 8, 80, S + 4)
    mf32(A, O + 4, VX + 4, S, None)
    mf16(A, O, VM, S + 4)
    mf16(A, O + 4, VM + 2, S + 4)
    A("v_rcp_f32 %s, %s" % (v(T), v(O + 8)))
    for c in range(4):
        A("v_pk_mul_f32 %s, %s, %s op_sel_hi:[1,0]" % (v(O + 2 * c, 2), v(O + 2 * c, 2), v(T, 2)))
        A("v_cvt_pk_bf16_f32 %s, %s, %s" % (v(S + c), v(O + 2 * c), v(O + 2 * c + 1)))
        A("v_min_u32 %s, s%d, %s" % (v(S + c), S_CLAMP, v(S + c)))
    local_store(A, ["buffer_store_dwordx4 %s, %s, %s, s93 offen" % (v(S, 4), v(V_OM), WSR)])
    stamp(A, cfg, "qpub")

    A("L_qk_x:")
    if cfg.get("nox"):
        A("s_branch L_qk_xe")
    L.q = []
    A("buffer_load_dword %s, %s, %s, 0 offen sc1" % (v(T + 3), v(V_FQ), WSR))
    for kk in range(4):
        L.issue(("q", kk), "ds_read_b128 %s, %s offset:%d" % (v(Q + 4 * kk, 4), v(V_QX), 1024 * kk))
    set_flag(A, V_FL, T + 1, S_STEP)
    A("v_mov_b32 %s, 0xff800000" % v(T))
    for i in range(8):
        A("v_cmp_gt_i32 vcc, %d, %s" % (16 * (i // 4) + i % 4, v(V_THR)))
        A("v_cndmask_b32 %s, 0, %s, vcc" % (v(S + i), v(T)))
    for r in range(4):
        A("v_mov_b32 %s, %s" % (v(S + 8 + r), v(V_NEG)))
    A("v_xor_b32 %s, 2048, %s" % (v(T + 2), v(V_VX)))
    for kk in range(4):
        L.wait(("q", kk))
        mf32(A, S, KX + 4 * kk, Q + 4 * kk, S)
        mf32(A, S + 4, KX + 16 + 4 * kk, Q + 4 * kk, S + 4)
        mf32(A, S + 8, KM + 4 * kk, Q + 4 * kk, S + 8)
        if kk == 2:
            for n in range(2):
                L.issue("vb", "ds_read_b128 %s, %s offset:%d" % (v(KX + 4 * n, 4), v(T + 2), 1024 * n))
    L.drain()
    A("s_barrier")
    poll_flags(A, V_FQ, T + 3, 96, "fq", preissued=1)
    kvq_dma()
    for r in range(4):
        A("v_mov_b32 %s, 0x3f803f80" % v(108 + r))
    softmax(A, S, T)
    O = 88
    mf32(A, O + 16, 108, S, None)
    mf32(A, O, VX, S, None)
    mf32(A, O + 4, VX + 4, S, None)
    mf32(A, O + 8, KX, S, None)
    mf32(A, O + 12, KX + 4, S, None)
    mf16(A, O + 16, 108, S + 4)
    for n in range(4):
        mf16(A, O + 4 * n, VM + 2 * n, S + 4)
    A("v_rcp_f32 %s, %s" % (v(T), v(O + 16)))
    for c in range(8):
        A("v_pk_mul_f32 %s, %s, %s op_sel_hi:[1,0]" % (v(O + 2 * c, 2), v(O + 2 * c, 2), v(T, 2)))
        A("v_cvt_pk_bf16_f32 %s, %s, %s" % (v(OXR + c), v(O + 2 * c), v(O + 2 * c + 1)))
    A("L_qk_xe:")
    stamp(A, cfg, "qx")
    stamp_flush(A, cfg, 108, 6)
    A("s_add_u32 s89, s89, 0x40000")
    A("s_add_u32 s%d, s%d, 1" % (S_STEP, S_STEP))
    A("s_cmp_lt_u32 s%d, 64" % S_STEP)
    A("s_cbranch_scc1 L_qk_top")
    A("v_xor_b32 v111, 2048, %s" % v(V_OX))
    for p in range(2):
        A("buffer_store_dwordx4 %s, %s, %s, s89 offen sc1" % (v(OXR + 4 * p, 4), v(V_OX if p == 0 else 111), WSR))
    A("s_waitcnt vmcnt(0)")
    set_flag(A, V_FL, 108, S_STEP)
    pstamp_flush(A, cfg, 110)
    A("s_endpgm")
    A("L_qk_last:")
    for kk in range(4):
        img(KM, L_KM, kk, ("km", kk))
    poll_data(A, vm_loads, range(VM, VM + 8), T, "pvl")
    A("s_waitcnt lgkmcnt(0)")
    A("s_branch L_qk_x")
    for f in tail:
        f()


def role_vo(A, cfg, census):
    L_RED, L_WL = 16384, 26624
    V_GL, V_IDX, V_ST, V_WL, V_VM, V_OG, V_RW, V_RR, V_PO, V_STW = 2, 3, 4, 5, 6, 7, 8, 9, 13, 0
    IDN = 10
    T, OF, LR = 14, 16, 96
    WSL = [112, 120, 96, 104]
    WOP = [48, 56, 80, 88, 96, 104, 112, 120]
    tail = []

    def vhome(p, f):
        if f == 1 and p % 2:
            return None
        n = p + p // 2 + (p % 2) + f
        return 256 + 192 + 8 * n if n < 8 else 128 + 8 * (n - 8)
    assert sorted(h for p in range(16) for f in range(2) for h in [vhome(p, f)] if h) == sorted([448 + 8 * n for n in range(8)] + [128 + 8 * n for n in range(16)])

    A("L_role_vo:")
    chain_setup(A)
    ring_consts(A)
    srd(A, SRD_A, P_WV, 1024 * 4096 * 2)
    srd(A, SRD_B, P_WO, 1024 * 4096 * 2)
    smf_idx(A, V_IDX, 21)
    make_identity(A, IDN)
    gather_addr(A, V_OG, 13, 11)
    gather_addr(A, V_GL, 12, 10)
    A("v_lshlrev_b32 %s, 4, v1" % v(V_ST))
    A("v_add_u32 %s, s64, %s" % (v(V_STW), v(V_ST)))
    A("v_lshrrev_b32 v21, 4, v1")
    A("v_lshrrev_b32 v20, 5, v1")
    A("v_lshlrev_b32 v20, 2, v20")
    A("v_bfe_u32 v22, v1, 4, 1")
    A("v_add_u32 v20, v20, v22")
    A("s_lshl_b32 s64, s%d, 6" % S_W)
    A("v_add_u32 v20, s64, v20")
    A("v_lshlrev_b32 v20, 13, v20")
    A("v_lshlrev_b32 v21, 2, v21")
    A("v_xor_b32 v21, v21, v23")
    A("v_lshl_add_u32 v20, v21, 4, v20")
    A("s_lshl_b32 s64, s82, 8")
    A("v_add_u32 v20, s64, v20")
    A("v_bfe_u32 v21, v1, 4, 1")
    A("v_bfe_u32 v22, v1, 2, 1")
    A("v_lshl_add_u32 v21, v21, 1, v22")
    A("v_and_b32 v22, 3, v1")
    A("s_lshl_b32 s64, s%d, 2" % S_W)
    A("v_add_u32 v22, s64, v22")
    A("v_lshlrev_b32 v96, 2, v21")
    A("v_xor_b32 v22, v22, v96")
    A("v_lshlrev_b32 v22, 4, v22")
    A("v_lshl_add_u32 v22, v21, 8, v22")
    A("v_bfe_u32 v21, v1, 3, 1")
    A("v_lshl_add_u32 v22, v21, 10, v22")
    A("v_lshrrev_b32 v21, 5, v1")
    A("v_lshl_add_u32 v96, v21, 12, v22")
    hi_copies(A, 96)
    A("s_lshl_b32 s83, s%d, 12" % S_W)
    smf_lane_rows(A, 22, 21, 7)
    A("v_lshlrev_b32 v21, 11, v22")
    A("v_lshl_add_u32 v21, v23, 3, v21")
    A("s_lshl_b32 s64, s80, 22")
    A("s_lshl_b32 s65, s%d, 20" % S_W)
    A("s_add_u32 s64, s64, s65")
    A("s_lshl_b32 s65, s81, 7")
    A("s_add_u32 s64, s64, s65")
    A("v_add_u32 v21, s64, v21")
    A("s_lshl_b32 s64, s%d, 15" % S_W)
    A("s_add_u32 s64, s64, %d" % L_WL)
    A("v_add_u32 %s, s64, %s" % (v(V_WL), v(V_ST)))
    A("v_and_b32 v24, 31, v1")
    A("v_lshlrev_b32 v24, 4, v24")
    A("v_lshrrev_b32 v25, 5, v1")
    A("v_lshl_add_u32 v24, v25, 3, v24")
    A("s_lshl_b32 s64, s%d, 9" % S_W)
    A("v_add_u32 %s, s64, v24" % v(V_VM))
    A("v_bfe_u32 v24, v1, 4, 1")
    A("v_lshl_add_u32 v24, v24, 1, v25")
    A("v_mul_u32_u24 v24, 576, v24")
    A("v_lshl_add_u32 v24, v23, 4, v24")
    A("s_mul_i32 s64, s%d, 2304" % S_W)
    A("s_add_u32 s64, s64, %d" % L_RED)
    A("v_add_u32 %s, s64, v24" % v(V_RW))
    A("v_bfe_u32 v24, v1, 2, 3")
    A("v_mul_u32_u24 v26, 288, v24")
    A("v_lshl_add_u32 v26, v25, 5, v26")
    A("v_and_b32 v27, 3, v1")
    A("v_lshl_add_u32 v26, v27, 3, v26")
    A("s_lshl_b32 s64, s%d, 6" % S_W)
    A("s_add_u32 s64, s64, %d" % L_RED)
    A("v_add_u32 %s, s64, v26" % v(V_RR))
    A("s_lshl_b32 s64, s81, 10")
    A("s_lshl_b32 s65, s%d, 8" % S_W)
    A("s_add_u32 s64, s64, s65")
    A("v_lshlrev_b32 v26, 2, v1")
    A("v_add_u32 %s, s64, v26" % v(V_PO))
    A("v_lshlrev_b32 v12, 11, v24")
    A("v_lshl_add_u32 v12, v25, 4, v12")
    A("v_lshl_add_u32 v12, v27, 2, v12")
    A("s_lshl_b32 s64, s81, 7")
    A("s_lshl_b32 s65, s%d, 5" % S_W)
    A("s_add_u32 s64, s64, s65")
    A("v_add_u32 v12, s64, v12")
    A("s_lshl_b32 s86, s80, 15")
    A("s_add_u32 s86, s86, 0x%x" % RING_O)
    A("s_lshl_b32 s87, s82, 11")
    A("s_add_u32 s87, s87, 0x%x" % RING_V)
    A("s_xor_b32 s88, s85, 0x4000")

    wv = []
    for p in range(16):
        ks = ORDER[p]
        reads = []
        for f in range(2):
            h = vhome(p, f)
            if h is None:
                h = 32 + 8 * (p // 2)
            reads += [(h + 2 * jp, 96, (jp // 2) * 8192 + (jp % 2) * 2048 + 8 * f) for jp in range(4)]
        wv.append(dict(slabs=[(SRD_A, 20, (256 * (ks // 4) + 16 * (ks % 4) + 2 * (s_ // 2) + 8 * (s_ % 2)) * 8192, 1024 * s_) for s_ in range(4)],
                       reads=reads))
    load_weights_tr(A, wv, 16, 9, 83, early=census.early, shared=True)
    A("s_barrier")
    for n in range(16):
        A("ds_write_b128 %s, %s offset:%d" % (v(V_WL), v(32 + 4 * n, 4), 16384 + 1024 * n))
    A("s_waitcnt lgkmcnt(0)")
    wo = []
    for k in range(8):
        for j in range(8):
            row = 16 * k + 256 * (j // 4) + 8 * (j % 2) + 2 * ((j % 4) // 2)
            post = []
            if j % 4 == 3:
                post = ["ds_write_b128 %s, %s offset:%d" % (v(V_WL), v(24 + j - 3, 4), k * 2048 + (j // 4) * 1024)]
            wo.append(dict(width=2, loads=[bload(2, 21, SRD_B, (row + u) * 2048) for u in range(2)], post=post,
                           outs=[(256 + 24 * k + 8 * f + j if f < 3 else ("t", j), f // 2, S_SELHI if f % 2 else S_SELLO) for f in range(4)]))
    load_weights(A, wo, set(range(32, 128)), [16, 17, 18, 19], ldsbuf=24)
    A("s_waitcnt lgkmcnt(0)")
    srd(A, SRD_A, P_MEM, 8 * 1024 * 2)
    A("buffer_load_dword v16, v12, s[%d:%d], 0 offen" % (SRD_A, SRD_A + 3))
    stamp(A, cfg, "vw")
    census(A)
    A("s_cmp_eq_u32 s80, 0")
    A("s_cselect_b32 s64, -1, 0")
    A("s_waitcnt vmcnt(0)")
    A("v_and_b32 v16, s64, v16")
    A("v_min_u32 v16, s%d, v16" % S_CLAMP)
    A("buffer_store_dword v16, %s, %s, s88 offen sc1" % (v(V_PO), WSR))
    local_store(A, ["buffer_store_dword v16, %s, %s, s84 offen" % (v(V_PO), WSR)])
    A("s_mov_b32 s%d, 0" % S_STEP)

    A("L_vo_top:")
    A("s_and_b32 s64, s%d, 3" % S_STEP)
    A("s_lshl_b32 s64, s64, 16")
    A("s_add_u32 s91, s84, s64")
    A("s_add_u32 s92, s85, s64")
    A("s_add_u32 s93, s86, s64")
    A("s_add_u32 s94, s87, s64")
    A("s_xor_b32 s65, s64, 0x20000")
    A("s_add_u32 s66, s64, 0x10000")
    A("s_and_b32 s66, s66, 0x30000")
    A("s_add_u32 s95, s88, s66")
    A("s_add_u32 s96, s84, s66")
    A("s_add_u32 s97, s88, s65")
    A("s_add_u32 s89, s84, s65")
    A("s_add_u32 s90, s87, s65")
    L = Cnt(A, "lgkmcnt", 15)
    G = Gather(A, cfg, "v", L, V_GL, V_STW, 12, IDN, LR, 91, 92, tail)

    def wread(n, hf):
        L.issue(("w", n), "ds_read_b128 %s, %s offset:%d" % (v(WSL[n % 4] + 4 * hf, 4), v(V_WL), (8 + n) * 2048 + hf * 1024))

    def aread(p):
        L.issue(("a", p), "ds_read_b128 %s, %s offset:%d" % (v(AR + 4 * (p % 4), 4), v(V_ST), ORDER[p] * 1024))

    def idle():
        for r in range(8):
            A("v_mov_b32 %s, 0" % v(ACC + r))
        A("v_mov_b32 %s, -1" % v(T))
        A("v_mov_b32 %s, -1" % v(T + 1))
        for n in range(4):
            wread(n, 0)
            wread(n, 1)

    G.head(lambda: None, idle, lambda: [aread(p) for p in range(4)])
    packs = G.pack(1) + G.pack(2) + G.pack(3)
    for _ in range(5):
        packs.pop(0)()
    q = []
    for p in range(16):
        L.wait(("a", p))
        stamp(A, cfg, "vp%d" % p)
        smf(A, ACC, AR + 4 * (p % 4), W(vhome(p, 0), 8), V_IDX)
        if packs:
            packs.pop(0)()
            packs.pop(0)()
        elif p == 5:
            A("buffer_store_dword %s, %s, %s, s97 offen sc1" % (v(T), v(V_PO), WSR))
        elif q:
            q.pop(0)()
        h = vhome(p, 1)
        if h is None:
            L.wait(("w", p // 2))
            smf(A, ACC + 4, AR + 4 * (p % 4), v(WSL[(p // 2) % 4], 8), V_IDX)
        else:
            smf(A, ACC + 4, AR + 4 * (p % 4), W(h, 8), V_IDX)
        if p < 2:
            packs.pop(0)()
            packs.pop(0)()
        if p in (0, 4):
            assert p == 0 or not packs
            L.wait(("st", 1 if p == 0 else 3))
            A("s_barrier")
        if p + 4 < 16:
            aread(p + 4)
        if h is None and p // 2 + 4 < 8:
            q += [lambda p=p: wread(p // 2 + 4, 0), lambda p=p: wread(p // 2 + 4, 1)]
        if q and p >= 12:
            q.pop(0)()
    assert not q
    stamp(A, cfg, "vmf")
    for r in range(4):
        A("v_permlane32_swap_b32 %s, %s" % (v(ACC + r), v(ACC + 4 + r)))
    for r in range(0, 4, 2):
        A("v_pk_add_f32 %s, %s, %s" % (v(ACC + r, 2), v(ACC + r, 2), v(ACC + 4 + r, 2)))
    for r in range(2):
        A("v_cvt_pk_bf16_f32 %s, %s, %s" % (v(OF + r), v(ACC + 2 * r), v(ACC + 2 * r + 1)))
        A("v_min_u32 %s, s%d, %s" % (v(OF + r), S_CLAMP, v(OF + r)))
    local_store(A, ["buffer_store_dwordx2 %s, %s, %s, s94 offen" % (v(OF, 2), v(V_VM), WSR),
                    "buffer_store_dwordx2 %s, %s, %s, s90 offen" % (v(T, 2), v(V_VM), WSR),
                    "buffer_store_dword %s, %s, %s, s89 offen" % (v(T), v(V_PO), WSR)])
    stamp(A, cfg, "vvm")
    A("s_cmp_eq_u32 s%d, 63" % S_STEP)
    A("s_cbranch_scc1 L_end")
    for k in range(8):
        for hf in range(2):
            A("ds_read_b128 %s, %s offset:%d" % (v(WOP[k] + 4 * hf, 4), v(V_WL), k * 2048 + hf * 1024))
    for r in range(16):
        A("v_mov_b32 %s, 0" % v(ACC + r))
    A("s_waitcnt lgkmcnt(0)")
    ol = ["buffer_load_dwordx4 %s, %s, %s, s93 offen offset:%d sc1" % (v(OF + 4 * k, 4), v(V_OG), WSR, 256 * k) for k in range(8)]
    NP = cfg.get("onp", 4)
    again, ofail = A.label("oa"), A.label("oc")
    A(again + ":")
    for k in range(NP):
        A(ol[k])
    A("s_waitcnt vmcnt(%d)" % (NP - 1))
    check_sent(A, range(OF, OF + 4), 12)
    A("s_cbranch_vccnz %s" % ofail)
    tail.append(lambda: (A(ofail + ":"), spin(A, again)))
    for k in range(NP, 8):
        A(ol[k])
    stamp(A, cfg, "vo")
    for k in range(8):
        n = OF + 4 * k + 4
        back, miss = A.label("ob"), A.label("om")
        chk = ["s_waitcnt vmcnt(%d)\nv_max3_u32 v12, %s, %s, %s" % (6 - k, v(n), v(n + 1), v(n + 2)),
               "v_max_u32 v12, v12, %s" % v(n + 3), "v_cmp_eq_u32 vcc, -1, v12", "s_cbranch_vccnz %s\n%s:" % (miss, back)]
        for f in range(4):
            smf(A, ACC + 4 * f, OF + 4 * k, a(24 * k + 8 * f, 8) if f < 3 else v(WOP[k], 8), V_IDX)
            if k < 7:
                A(chk[f])
        if k < 7:
            def out(back=back, miss=miss, k=k):
                A(miss + ":")
                poll_data(A, ol[k + 1:], range(OF + 4 * k + 4, OF + 32), 12, "por")
                A("s_branch %s" % back)
            tail.append(out)
    stamp(A, cfg, "vmf2")
    for u in range(2):
        for f in range(4):
            A("v_permlane32_swap_b32 %s, %s" % (v(ACC + 4 * f + u), v(ACC + 4 * f + u + 2)))
        for f in range(4):
            A("v_add_f32 %s, %s, %s" % (v(OF + 4 * u + f), v(ACC + 4 * f + u), v(ACC + 4 * f + u + 2)))
        A("ds_write_b128 %s, %s offset:%d" % (v(V_RW), v(OF + 4 * u, 4), 288 * u))
    A("s_waitcnt lgkmcnt(0)")
    A("s_barrier")
    stamp(A, cfg, "vbar2")
    for k in range(4):
        A("ds_read_b64 %s, %s offset:%d" % (v(ACC + 2 * k, 2), v(V_RR), 2304 * k))
    A("s_waitcnt lgkmcnt(2)")
    A("v_pk_add_f32 %s, %s, %s" % (v(ACC, 2), v(ACC, 2), v(ACC + 2, 2)))
    A("s_waitcnt lgkmcnt(0)")
    A("v_pk_add_f32 %s, %s, %s" % (v(ACC + 4, 2), v(ACC + 4, 2), v(ACC + 6, 2)))
    A("v_pk_add_f32 %s, %s, %s" % (v(ACC, 2), v(ACC, 2), v(ACC + 4, 2)))
    A("v_cvt_pk_bf16_f32 %s, %s, %s" % (v(ACC), v(ACC), v(ACC + 1)))
    A("v_min_u32 %s, s%d, %s" % (v(ACC), S_CLAMP, v(ACC)))
    if not cfg.get("locfirst", 1):
        A("buffer_store_dword %s, %s, %s, s95 offen sc1" % (v(ACC), v(V_PO), WSR))
    local_store(A, ["buffer_store_dword %s, %s, %s, s96 offen" % (v(ACC), v(V_PO), WSR)])
    if cfg.get("locfirst", 1):
        A("buffer_store_dword %s, %s, %s, s95 offen sc1" % (v(ACC), v(V_PO), WSR))
    stamp(A, cfg, "vpub")
    stamp_flush(A, cfg, OF, 6)
    A("s_add_u32 s%d, s%d, 1" % (S_STEP, S_STEP))
    A("s_branch L_vo_top")
    for f in tail:
        f()
```

```python
from asmlib import Asm, v, a, s, W

NAME = "sequential_preLN__memory_aug_recurrent_mem_tr__geglu_ffn__prompt"

WS_BYTES = 268435456
FLAGS = 0x0
RING_P = 0x10000
RING_O = 0x50000
RING_V = 0x90000
RING_X = 0xD0000
RING_END = 0x1D0000
XN = 0x200000
STAMPS = 0x700000
KVQ = 0x0C00000
OX = 0x4000000
HF = 0x6400000
HS = 0x6800000
ACT = 0x7000000

ID_WO, ID_F2, ID_QKV, ID_F1, ID_AUX = 64, 128, 80, 192, 220


def id_qkv_s(A, sr, st):
    A("s_lshr_b32 s%d, s%d, 4" % (st, sr))
    A("s_lshl_b32 s%d, s%d, 5" % (st, st))
    A("s_and_b32 s%d, s%d, 15" % (sr, sr))
    A("s_add_u32 s%d, s%d, s%d" % (sr, sr, st))
    A("s_add_u32 s%d, s%d, %d" % (sr, sr, ID_QKV))


P_X, P_MEM, P_WQ, P_WK, P_WV, P_WO = 8, 10, 12, 14, 16, 18
P_WG, P_WU, P_WD, P_OUT, P_DBG, P_WS = 24, 26, 28, 30, 32, 34
SRD_WS, SRD_DBG, SRD_A, SRD_B = 36, 40, 44, 48
S_W, S_IDX, S_SLOW, S_STEP, S_XCC, S_TICK, S_CENS, S_SPIN = 56, 57, 58, 59, 60, 61, 62, 63
S_SELLO, S_SELHI, S_CLAMP, S_SUB = 52, 53, 54, 55
S_T = 64
S_R = 80
SPIN_LIMIT = 1 << 17
OOB = 0x7FFF0000


class Cnt:
    def __init__(self, asm, name, mx):
        self.asm, self.name, self.mx = asm, name, mx
        self.q = []

    def issue(self, tag, text):
        self.asm(text)
        self.q.append(tag)

    def wait(self, tag):
        if tag not in self.q:
            return
        i = len(self.q) - 1 - self.q[::-1].index(tag)
        n = min(len(self.q) - 1 - i, self.mx)
        self.asm("s_waitcnt %s(%d)" % (self.name, n))
        self.q = self.q[len(self.q) - n:] if n else []

    def drain(self):
        self.asm("s_waitcnt %s(0)" % self.name)
        self.q = []


def srd(A, d, ptr, nbytes):
    A("s_mov_b32 s%d, s%d" % (d, ptr))
    A("s_and_b32 s%d, s%d, 0xffff" % (d + 1, ptr + 1))
    A("s_mov_b32 s%d, 0x%x" % (d + 2, nbytes))
    A("s_mov_b32 s%d, 0x20000" % (d + 3))


def srd_sel(A, d, ptr_true, ptr_false, nbytes):
    A("s_cselect_b32 s%d, s%d, s%d" % (d, ptr_true, ptr_false))
    A("s_cselect_b32 s%d, s%d, s%d" % (d + 1, ptr_true + 1, ptr_false + 1))
    A("s_and_b32 s%d, s%d, 0xffff" % (d + 1, d + 1))
    A("s_mov_b32 s%d, 0x%x" % (d + 2, nbytes))
    A("s_mov_b32 s%d, 0x20000" % (d + 3))


def spin(A, again):
    A("s_add_u32 s%d, s%d, 1" % (S_SPIN, S_SPIN))
    A("s_cmp_lt_u32 s%d, 0x%x" % (S_SPIN, SPIN_LIMIT))
    A("s_cbranch_scc1 %s" % again)
    A("s_branch L_giveup")


def check_sent(A, regs, tmp):
    regs = list(regs)
    if len(regs) == 2:
        A("v_max_u32 %s, %s, %s" % (v(tmp), v(regs[0]), v(regs[1])))
        rest = []
    else:
        A("v_max3_u32 %s, %s, %s, %s" % (v(tmp), v(regs[0]), v(regs[1]), v(regs[2])))
        rest = regs[3:]
    while len(rest) >= 2:
        A("v_max3_u32 %s, %s, %s, %s" % (v(tmp), v(tmp), v(rest[0]), v(rest[1])))
        rest = rest[2:]
    if rest:
        A("v_max_u32 %s, %s, %s" % (v(tmp), v(tmp), v(rest[0])))
    A("v_cmp_eq_u32 vcc, -1, %s" % v(tmp))


def poll_data(A, loads, regs, tmp, stem):
    top, ok = A.label(stem), A.label(stem + "_ok")
    A(top + ":")
    for t in loads:
        A(t)
    A("s_waitcnt vmcnt(0)")
    check_sent(A, regs, tmp)
    A("s_cbranch_vccz %s" % ok)
    spin(A, top)
    A(ok + ":")


def poll_flags(A, voff, vtmp, starget, stem, preissued=None):
    top, ok = A.label(stem), A.label(stem + "_ok")
    if preissued is not None:
        A("s_waitcnt vmcnt(%d)" % preissued)
        A("v_cmp_gt_u32 vcc, s%d, %s" % (starget, v(vtmp)))
        A("s_cbranch_vccz %s" % ok)
    A(top + ":")
    A("buffer_load_dword %s, %s, s[%d:%d], 0 offen sc1" % (v(vtmp), v(voff), SRD_WS, SRD_WS + 3))
    A("s_waitcnt vmcnt(0)")
    A("v_cmp_gt_u32 vcc, s%d, %s" % (starget, v(vtmp)))
    A("s_cbranch_vccz %s" % ok)
    spin(A, top)
    A(ok + ":")


def local_store(A, text):
    sl, dn = A.label("sl"), A.label("sd")
    A("s_cmp_lg_u32 s%d, 0" % S_SLOW)
    A("s_cbranch_scc1 %s" % sl)
    for t in text:
        A(t)
    A("s_branch %s" % dn)
    A(sl + ":")
    for t in text:
        A(t + " sc1")
    A(dn + ":")


def set_flag(A, voff, vtmp, sval):
    A("v_mov_b32 %s, s%d" % (v(vtmp), sval))
    A("buffer_store_dword %s, %s, s[%d:%d], 0 offen sc1" % (v(vtmp), v(voff), SRD_WS, SRD_WS + 3))


def flag_addr_own(A, vd, vlane, sid):
    A("s_lshl_b32 s%d, s%d, 7" % (S_T, sid))
    A("s_lshl_b32 s%d, s%d, 2" % (S_T + 1, S_W))
    A("s_add_u32 s%d, s%d, s%d" % (S_T, S_T, S_T + 1))
    A("v_mov_b32 %s, 0x%x" % (v(vd), OOB))
    A("v_mov_b32 v255, s%d" % S_T)
    A("v_cmp_eq_u32 vcc, 0, %s" % v(vlane))
    A("v_cndmask_b32 %s, %s, v255, vcc" % (v(vd), v(vd)))


def stamp(A, cfg, name):
    if cfg.get("stamps"):
        if isinstance(name, int):
            A("s_memrealtime s[%d:%d]" % (68 + 2 * name, 69 + 2 * name))
        elif name in cfg["sp"]:
            k = cfg["sp"].index(name) % 6
            A("%s s[%d:%d]" % ("s_memtime" if cfg.get("cyc") else "s_memrealtime", 68 + 2 * k, 69 + 2 * k))


def pstamp(A, cfg):
    if cfg.get("pst"):
        for k, st in enumerate((0, 8, 60)):
            l = A.label("ps")
            A("s_cmp_lg_u32 s%d, %d" % (S_STEP, st))
            A("s_cbranch_scc1 %s" % l)
            A("s_memrealtime s[%d:%d]" % (68 + 4 * k, 69 + 4 * k))
            if k:
                A("s_memtime s[%d:%d]" % (66 + 4 * k, 67 + 4 * k))
            A(l + ":")


def pstamp_flush(A, cfg, vr):
    if cfg.get("pst"):
        A("s_memrealtime s[78:79]")
        A("s_mov_b32 s%d, 0" % S_STEP)
        stamp_flush(A, dict(stamps=1), vr, 6)


def stamp_flush(A, cfg, vr, n=6, first=0, sreg=None):
    if not cfg.get("stamps"):
        return
    st = S_STEP if sreg is None else sreg
    skip = A.label("st")
    A("s_waitcnt lgkmcnt(0)")
    A("s_cmp_lg_u32 s%d, 0" % S_W)
    A("s_cbranch_scc1 %s" % skip)
    A("s_lshl_b32 s4, s%d, 12" % S_IDX)
    A("s_lshl_b32 s5, s%d, 5" % st)
    A("s_add_u32 s4, s4, s5")
    A("s_add_u32 s4, s4, 0x%x" % (STAMPS + 4 * first))
    A("v_mbcnt_lo_u32_b32 %s, -1, 0" % v(vr + 1))
    A("v_lshlrev_b32 %s, 2, %s" % (v(vr + 1), v(vr + 1)))
    for k in range(n):
        A("v_writelane_b32 %s, s%d, %d" % (v(vr), 68 + 2 * k, k))
    A("s_mov_b64 exec, %d" % ((1 << n) - 1))
    A("buffer_store_dword %s, %s, s[%d:%d], s4 offen" % (v(vr), v(vr + 1), SRD_WS, SRD_WS + 3))
    A("s_mov_b64 exec, -1")
    A(skip + ":")


def load_weights(A, units, pool, temps, ldsbuf=None, maxfly=30, wait_every=2, early=None):
    first = {}
    for n, u in enumerate(units):
        for d, _, _ in u["outs"]:
            if not isinstance(d, tuple) and d < 256:
                first.setdefault(d, n)
    busy = set()
    land = {}
    issued = 0
    tk = [0]

    def alloc(n, cnt):
        for r in sorted(pool, reverse=True):
            if r % 2:
                continue
            rr = range(r, r + cnt)
            if all((x in pool) and (x not in busy) and first.get(x, 1 << 30) > n for x in rr):
                return r
        return None

    def issue(n):
        wd = units[n]["width"]
        r = alloc(n, 2 * wd)
        if r is None:
            return False
        busy.update(range(r, r + 2 * wd))
        land[n] = r
        for k in range(2):
            for t in units[n]["loads"][k](r + k * wd):
                A(t)
        return True

    waited = -1
    for n, u in enumerate(units):
        while issued < len(units) and issued - n < maxfly and issue(issued):
            issued += 1
        assert issued > n, "loader ran out of landing registers"
        if waited < n:
            waited = min(n + wait_every - 1, issued - 1)
            A("s_waitcnt vmcnt(%d)" % (2 * (issued - 1 - waited)))
            if n == 0 and early:
                early(A)
        r, wd = land[n], u["width"]
        for d, c, sel in u["outs"]:
            if isinstance(d, tuple):
                dv = ldsbuf + d[1]
            elif d >= 256:
                dv = temps[tk[0] % len(temps)]
                tk[0] += 1
            else:
                dv = d
            A("v_perm_b32 %s, %s, %s, s%d" % (v(dv), v(r + wd + c), v(r + c), sel))
            if not isinstance(d, tuple) and d >= 256:
                A("v_accvgpr_write_b32 %s, %s" % (W(d), v(dv)))
        for t in u.get("post", ()):
            A(t)
        busy.difference_update(range(r, r + 2 * wd))


def load_weights_tr(A, units, ukb, nslots, s_ring, early=None, shared=False, cfg={}):
    V = Cnt(A, "vmcnt", 63)
    L = Cnt(A, "lgkmcnt", 15)
    issued = 0

    def issue(n):
        if n >= nslots and not shared:
            L.wait(("u", n - nslots))
        for srd_, va, off, lo in units[n]["slabs"]:
            A("s_add_u32 m0, s%d, %d" % (s_ring, (n % nslots) * ukb * 1024 + lo))
            A("s_mov_b32 s%d, 0x%x" % (S_T, off))
            V.issue(("u", n), "buffer_load_dwordx4 %s, s[%d:%d], s%d offen nt lds" % (v(va), srd_, srd_ + 3, S_T))

    def ahead(n):
        nonlocal issued
        while issued < len(units) and issued < n + nslots - (1 if n else 0) and len(V.q) + len(units[issued]["slabs"]) <= 60:
            issue(issued)
            issued += 1

    for n, u in enumerate(units):
        if not shared or n == 0:
            ahead(n)
        V.wait(("u", n))
        stamp(A, cfg, "u%d" % n)
        if shared:
            L.wait(("u", n - 1))
            A("s_barrier")
            ahead(n + 1 if n else 0)
        if n == 0 and early:
            early(A)
        for dst, vl, off in u["reads"]:
            L.issue(("u", n), "ds_read_b64_tr_b16 %s, %s offset:%d" % (W(dst, 2), v(vl + ((n % nslots) * ukb * 1024 + off) // 65536), ((n % nslots) * ukb * 1024 + off) % 65536))
    L.drain()


def hi_copies(A, vl, n=2):
    for k in range(1, n + 1):
        A("v_add_u32 %s, 0x%x, %s" % (v(vl + k), 65536 * k, v(vl)))


def bload(width, voff, srd_, off):
    op = "buffer_load_dword" if width == 1 else "buffer_load_dwordx%d" % width

    def f(reg):
        return ["s_mov_b32 s%d, 0x%x" % (S_T, off),
                "%s %s, %s, s[%d:%d], s%d offen nt" % (op, v(reg, width), v(voff), srd_, srd_ + 3, S_T)]
    return f


def smf_row(j):
    return 32 * (j // 4) + 8 * (j % 2) + 2 * ((j % 4) // 2)
```

```python
from common import *

WSR = "s[%d:%d]" % (SRD_WS, SRD_WS + 3)
AR_ = "s[%d:%d]" % (SRD_A, SRD_A + 3)
BR_ = "s[%d:%d]" % (SRD_B, SRD_B + 3)


def flag_lanes(A, vd, vt, sbase, ncu, per32=None):
    A("v_lshrrev_b32 %s, 2, v0" % v(vt))
    A("v_min_u32 %s, %d, %s" % (v(vt), ncu - 1, v(vt)))
    A("v_add_u32 %s, s%d, %s" % (v(vt), sbase, v(vt)))
    A("v_lshlrev_b32 %s, 7, %s" % (v(vt), v(vt)))
    A("v_and_b32 %s, 3, v0" % v(vd))
    A("v_lshl_add_u32 %s, %s, 2, %s" % (v(vd), v(vd), v(vt)))


def dma_block(A, vaddr, s_lds, s_glob, n, t0=S_T):
    out = []
    for k in range(n):
        grp = []
        if k % 4 == 0:
            grp.append("s_add_u32 s%d, s%d, %d" % (t0, s_lds, 1024 * k))
            grp.append("s_add_u32 s%d, s%d, %d" % (t0 + 1, s_glob, 1024 * k))
            grp.append("s_mov_b32 m0, s%d" % t0)
        grp.append("buffer_load_dwordx4 %s, %s, s%d offen offset:%d sc1 lds" % (v(vaddr), WSR, t0 + 1, 1024 * (k % 4)))
        out.append(grp)
    return out


def late_start(A, cfg, census, vtmp):
    A("s_waitcnt vmcnt(0)")
    census.early(A)
    census(A)
    if cfg.get("nolate"):
        return
    A("v_mov_b32 %s, %d" % (v(vtmp), ID_QKV * 128))
    A("s_mov_b32 s86, 1")
    poll_flags(A, vtmp, vtmp + 1, 86, "late")


def role_qkv(A, cfg, census):
    V_L16, V_FL, V_FX, V_DM, V_OT, V_OV, V_RD = 2, 3, 4, 5, 6, 7, 8
    ACC, FR, T = 16, 48, 96
    DEPTH = 4
    A("L_role_qkv:")
    A("s_sub_u32 s80, s%d, 64" % S_IDX)
    A("s_lshr_b32 s80, s80, 5")
    A("s_lshl_b32 s80, s80, 4")
    A("s_and_b32 s64, s%d, 15" % S_IDX)
    A("s_add_u32 s80, s80, s64")
    A("s_and_b32 s66, s%d, 1" % S_W)
    A("s_lshr_b32 s67, s%d, 1" % S_W)
    srd(A, SRD_A, P_WQ, 1024 * 4096 * 2)
    srd(A, SRD_B, P_WK, 1024 * 4096 * 2)
    srd(A, 4, P_WV, 1024 * 4096 * 2)
    A("v_lshrrev_b32 v20, 3, v0")
    A("s_lshl_b32 s64, s%d, 3" % S_W)
    A("v_add_u32 v20, s64, v20")
    A("v_lshlrev_b32 v20, 13, v20")
    A("v_bfe_u32 v21, v0, 4, 1")
    A("v_lshlrev_b32 v21, 2, v21")
    A("v_and_b32 v22, 7, v0")
    A("v_xor_b32 v21, v21, v22")
    A("v_lshl_add_u32 v20, v21, 4, v20")
    A("s_lshl_b32 s64, s80, 7")
    A("v_add_u32 v20, s64, v20")
    A("s_lshl_b32 s83, s%d, 10" % S_W)
    A("v_lshrrev_b32 v24, 4, v0")
    A("v_bfe_u32 v25, v0, 2, 2")
    A("v_lshl_add_u32 v24, v24, 3, v25")
    A("v_lshlrev_b32 v24, 7, v24")
    A("v_and_b32 v23, 3, v0")
    A("v_lshl_add_u32 v24, v23, 4, v24")
    A("v_bfe_u32 v25, v0, 3, 1")
    A("v_xor_b32 v26, s66, v25")
    A("v_lshl_add_u32 v32, v26, 6, v24")
    A("s_lshl_b32 s64, s67, 12")
    A("v_add_u32 v32, s64, v32")
    hi_copies(A, 32)
    A("v_xor_b32 v26, s67, v25")
    A("v_lshl_add_u32 v36, v26, 6, v24")
    A("s_lshl_b32 s64, s66, 3")
    A("s_add_u32 s64, s64, 8192")
    A("v_add_u32 v36, s64, v36")
    hi_copies(A, 36)
    flag_addr_own(A, V_FL, 0, S_IDX)
    A("v_lshlrev_b32 %s, 4, v0" % v(V_L16))
    A("s_lshl_b32 s81, s%d, 13" % S_W)
    A("v_add_u32 %s, s81, %s" % (v(V_DM), v(V_L16)))
    A("v_add_u32 v23, %d, v23" % ID_AUX)
    A("v_lshlrev_b32 v23, 7, v23")
    A("s_lshl_b32 s64, s%d, 2" % S_W)
    A("s_add_u32 s64, s64, 64")
    A("v_add_u32 %s, s64, v23" % v(V_FX))
    A("s_and_b32 s64, s80, 1")
    A("s_lshl_b32 s65, s64, 1")
    A("s_add_u32 s65, s65, s66")
    A("s_lshl_b32 s65, s65, 10")
    A("s_cmp_lt_u32 s%d, 2" % S_W)
    A("s_cselect_b32 s67, 16384, 0")
    A("s_add_u32 s65, s65, s67")
    A("v_add_u32 %s, s65, %s" % (v(V_OT), v(V_L16)))
    A("s_lshl_b32 s65, s64, 2")
    A("s_add_u32 s65, s65, s%d" % S_W)
    A("s_lshl_b32 s65, s65, 10")
    A("s_add_u32 s65, s65, 8192")
    A("v_add_u32 %s, s65, %s" % (v(V_OV), v(V_L16)))
    A("s_lshr_b32 s82, s80, 1")
    A("s_mul_i32 s82, s82, 24576")
    A("s_add_u32 s82, s82, 0x%x" % KVQ)

    def home(kk, t):
        n = 3 * kk + t
        return 256 + 4 * n if n < 64 else 128 + 4 * (n - 64)
    units = []
    for kk in range(32):
        units.append(dict(slabs=[(sr, 20, 32 * kk * 8192, 4096 * m) for m, sr in enumerate((SRD_A, SRD_B, 4))],
                          reads=[(home(kk, f) + 2 * hf, 32, 512 * hf + 8 * f) for f in range(2) for hf in range(2)] +
                                [(home(kk, 2) + 2 * hf, 36, 512 * hf) for hf in range(2)]))
    load_weights_tr(A, units, 12, 13, 83, early=census.early, shared=True, cfg=cfg)
    stamp(A, cfg, "pw")
    census(A)
    A("s_add_u32 s83, s82, 4096")
    A("s_barrier")

    def dma(sl, sg):
        return dma_block(A, V_DM, sl, sg, 8)
    A("s_mov_b32 s%d, 0" % S_STEP)
    A("s_mov_b32 s84, 0x%x" % XN)
    A("s_mov_b32 s85, s81")
    A("s_mov_b32 s86, 1")
    poll_flags(A, V_FX, T, 86, "fx0")
    A("s_add_u32 s87, s84, 32768")
    A("s_add_u32 s88, s85, 32768")
    for g in dma(85, 84) + dma(88, 87):
        for t in g:
            A(t)
    A("v_mov_b32 %s, %s" % (v(V_RD), v(V_L16)))
    A("v_xor_b32 %s, 0x1000, %s" % (v(V_FX), v(V_FX)))
    A("buffer_load_dword %s, %s, %s, 0 offen sc1" % (v(T + 12), v(V_FX), WSR))
    A("s_waitcnt vmcnt(0)")

    A("L_qkv_top:")
    A("s_waitcnt vmcnt(3)")
    A("s_barrier")
    stamp(A, cfg, "pa")
    L = Cnt(A, "lgkmcnt", 15)

    def rd(kk):
        for tt in range(2):
            L.issue(kk, "ds_read_b128 %s, %s offset:%d" % (v(FR + 8 * (kk % DEPTH) + 4 * tt, 4), v(V_RD), 32768 * tt + 1024 * kk))
    for kk in range(DEPTH - 1):
        rd(kk)
    A("s_add_u32 s84, s84, 0x10000")
    A("s_xor_b32 s85, s85, 0x10000")
    A("s_add_u32 s87, s84, 32768")
    A("s_add_u32 s88, s85, 32768")
    A("s_add_u32 s86, s%d, 3" % S_STEP)
    A("s_lshr_b32 s86, s86, 1")
    A("s_min_u32 s86, s86, 32")
    poll_flags(A, V_FX, T + 12, 86, "fx", preissued=3)
    A("v_xor_b32 %s, 0x1000, %s" % (v(V_FX), v(V_FX)))
    groups = dma(85, 84) + dma(88, 87)
    ndma = 0
    for kk in range(32):
        L.wait(kk)
        f = FR + 8 * (kk % DEPTH)
        n = 0
        for t in range(3):
            for tt in range(2):
                d = ACC + 8 * t + 4 * tt
                c = "0" if kk == 0 else v(d, 4)
                wv, xv = W(home(kk, t), 4), v(f + 4 * tt, 4)
                A("v_mfma_f32_16x16x32_bf16 %s, %s, %s, %s" % ((v(d, 4), wv, xv, c) if t < 2 else (v(d, 4), xv, wv, c)))
                n += 1
                if n == 1 and kk + DEPTH - 1 < 32:
                    rd(kk + DEPTH - 1)
                if n == 4 and groups:
                    for t_ in groups.pop(0):
                        A(t_)
                    ndma += 1
                if n == 4 and kk == 18:
                    A("s_waitcnt vmcnt(%d)" % ndma)
                    set_flag(A, V_FL, T + 13, S_STEP)
                if n == 4 and kk == 30:
                    A("buffer_load_dword %s, %s, %s, 0 offen sc1" % (v(T + 12), v(V_FX), WSR))
    assert not groups
    stamp(A, cfg, "pb")
    for tt in range(2):
        for c in range(4):
            b = ACC + 8 * (c // 2) + 4 * tt + 2 * (c % 2)
            A("v_cvt_pk_bf16_f32 %s, %s, %s" % (v(T + 4 * tt + c), v(b), v(b + 1)))
        A("buffer_store_dwordx4 %s, %s, %s, s%d offen sc1" % (v(T + 4 * tt, 4), v(V_OT), WSR, 82 + tt))
    for r in range(4):
        A("v_cvt_pk_bf16_f32 %s, %s, %s" % (v(T + 8 + r), v(ACC + 16 + 2 * r), v(ACC + 17 + 2 * r)))
    A("buffer_store_dwordx4 %s, %s, %s, s82 offen sc1" % (v(T + 8, 4), v(V_OV), WSR))
    stamp(A, cfg, "pc")
    stamp_flush(A, cfg, T + 14, 6)
    A("v_xor_b32 %s, 0x10000, %s" % (v(V_RD), v(V_RD)))
    A("s_add_u32 s82, s82, %d" % (32 * 24576))
    A("s_add_u32 s83, s83, %d" % (32 * 24576))
    A("s_add_u32 s%d, s%d, 1" % (S_STEP, S_STEP))
    A("s_cmp_gt_u32 s%d, 2" % S_STEP)
    A("s_cbranch_scc1 L_qkv_next")
    A("s_waitcnt vmcnt(0)")
    set_flag(A, V_FL, T + 13, S_STEP)
    A("L_qkv_next:")
    A("s_cmp_lt_u32 s%d, 64" % S_STEP)
    A("s_cbranch_scc1 L_qkv_top")
    A("s_waitcnt vmcnt(0)")
    set_flag(A, V_FL, T + 13, S_STEP)
    A("s_endpgm")


def role_proj(A, cfg, census, name):
    wo = name == "wo"
    NK = 32 if wo else 28
    V_L16, V_FL, V_FP, V_IN, V_RW, V_RR, V_OUT, V_L4, V_HF, V_RM = 2, 3, 4, 5, 6, 7, 8, 9, 10, 11
    ACC, FR, T, RES, PP, HOLD = 16, 64, 48, 52, 56, 192
    A("L_role_%s:" % name)
    A("s_bfe_u32 s80, s%d, 0x10005" % S_IDX)
    A("s_and_b32 s81, s%d, 15" % S_IDX)
    srd(A, SRD_A, P_WO if wo else P_WD, (4096 if wo else 3584) * 2048)
    A("s_lshl_b32 s82, s80, 2")
    A("s_add_u32 s82, s82, s%d" % S_W)
    A("v_lshrrev_b32 v20, 3, v0")
    A("v_lshlrev_b32 v20, 11, v20")
    A("v_and_b32 v21, 7, v0")
    A("v_lshl_add_u32 v20, v21, 4, v20")
    A("s_mul_i32 s64, s82, %d" % (NK * 16 * 2048))
    A("s_lshl_b32 s65, s81, 7")
    A("s_add_u32 s64, s64, s65")
    A("v_add_u32 v20, s64, v20")
    A("v_lshrrev_b32 v22, 5, v0")
    A("v_bfe_u32 v21, v0, 2, 2")
    A("v_lshlrev_b32 v21, 7, v21")
    A("v_lshl_add_u32 v21, v22, %d, v21" % (10 if wo else 9))
    A("v_bfe_u32 v23, v0, 4, 1")
    A("v_lshl_add_u32 v21, v23, 6, v21")
    A("v_and_b32 v23, 3, v0")
    A("v_lshl_add_u32 v21, v23, 4, v21")
    A("s_mul_i32 s83, s%d, 40960" % S_W)
    A("v_add_u32 v21, s83, v21")
    flag_addr_own(A, V_FL, 0, S_IDX)
    A("v_lshlrev_b32 %s, 4, v0" % v(V_L16))
    A("s_mul_i32 s64, s82, %d" % (NK * 1024))
    A("v_add_u32 %s, s64, %s" % (v(V_IN), v(V_L16)))
    A("s_lshl_b32 s64, s80, 5")
    A("s_mul_i32 s65, s%d, %d" % (S_W, 4 if wo else 7))
    A("s_add_u32 s64, s64, s65")
    if not wo:
        A("s_add_u32 s64, s64, %d" % ID_F1)
    flag_lanes(A, V_FP, 24, 64, 4 if wo else 7)
    A("v_and_b32 v23, 31, v0")
    A("v_lshlrev_b32 v24, 10, v22")
    A("v_lshl_add_u32 v24, v23, 4, v24")
    A("s_lshl_b32 s64, s%d, 13" % S_W)
    A("v_add_u32 %s, s64, v24" % v(V_RW))
    A("s_lshl_b32 s64, s%d, 11" % S_W)
    A("v_add_u32 %s, s64, v24" % v(V_RR))
    A("s_lshl_b32 s65, s81, 13")
    A("s_add_u32 s64, s64, s65")
    A("v_add_u32 %s, s64, v24" % v(V_OUT))
    A("s_lshr_b32 s64, s64, 10")
    A("v_add_u32 v25, s64, v22")
    A("v_lshlrev_b32 v26, 4, v23")
    A("v_lshl_add_u32 %s, v25, 9, v26" % v(V_HF))
    A("v_lshlrev_b32 v26, 11, v23")
    A("v_lshl_add_u32 %s, v25, 4, v26" % v(V_RM))
    A("s_lshr_b32 s88, s%d, 1" % S_W)
    A("s_xor_b32 s88, s88, s80")
    A("v_lshlrev_b32 %s, 2, v0" % v(V_L4))
    A("s_lshl_b32 s96, s81, 2")
    A("s_add_u32 s96, s96, s%d" % S_W)
    A("s_lshl_b32 s96, s96, 8")
    A("s_add_u32 s96, s96, 0x%x" % HS)
    srd(A, SRD_B, P_X if wo else P_OUT, 2048 * 2048)
    late_start(A, cfg, census, 30)
    units = []
    for ks in range(NK):
        units.append(dict(slabs=[(SRD_A, 20, (16 * ks + 8 * k) * 2048, 1024 * k) for k in range(2)],
                          reads=[(256 + 8 * ks + 4 * f + 2 * hf, 21, (512 if wo else 1024) * hf + 8 * f) for f in range(2) for hf in range(2)]))
    load_weights_tr(A, units, 2, cfg.get("lslots", 16), 83)
    A("s_mov_b32 s%d, 0" % S_STEP)
    A("s_mov_b32 s84, 0x%x" % (OX if wo else ACT))
    A("s_mov_b32 s92, 0")
    BLK = 0x40000 if wo else 224 * 1024

    def loads():
        for ks in range(NK):
            if ks % 4 == 0:
                A("s_add_u32 s64, s84, %d" % (1024 * ks))
            A("buffer_load_dwordx4 %s, %s, %s, s64 offen offset:%d sc1" % (v(FR + 4 * ks, 4), v(V_IN), WSR, 1024 * (ks % 4)))
        A("s_add_u32 s84, s84, %d" % BLK)

    pl = lambda so: ["buffer_load_dwordx4 %s, %s, %s, s%d offen offset:%d sc1" % (v(PP + 4 * f, 4), v(V_OUT), WSR, so, 512 * f) for f in range(2)]

    def finish():
        got = A.label("got")
        check_sent(A, range(PP, PP + 8), T + 2)
        A("s_cbranch_vccz %s" % got)
        poll_data(A, pl(95), range(PP, PP + 8), T + 2, "px")
        A(got + ":")
        A("s_lshl_b32 s64, s92, 16")
        for d in range(4):
            A("v_pk_add_f32 %s, %s, %s" % (v(HOLD + 2 * d, 2), v(HOLD + 2 * d, 2), v(PP + 2 * d, 2)))
            A("v_cvt_pk_bf16_f32 %s, %s, %s" % (v(PP + d), v(HOLD + 2 * d), v(HOLD + 2 * d + 1)))
        if wo:
            A("s_add_u32 s65, s64, 0x%x" % HF)
            A("buffer_store_dwordx4 %s, %s, %s, s65 offen sc1" % (v(PP, 4), v(V_HF), WSR))
            A("v_pk_mul_f32 %s, %s, %s" % (v(PP + 6, 2), v(HOLD, 2), v(HOLD, 2)))
            for d in range(1, 4):
                A("v_pk_fma_f32 %s, %s, %s, %s" % (v(PP + 6, 2), v(HOLD + 2 * d, 2), v(HOLD + 2 * d, 2), v(PP + 6, 2)))
                A("v_pk_add_f32 %s, %s, %s" % (v(HOLD, 2), v(HOLD, 2), v(HOLD + 2 * d, 2)))
            A("v_add_f32 %s, %s, %s" % (v(HOLD), v(HOLD), v(HOLD + 1)))
            A("v_add_f32 %s, %s, %s" % (v(HOLD + 1), v(PP + 6), v(PP + 7)))
            A("s_lshr_b32 s64, s64, 2")
            A("s_add_u32 s64, s64, s96")
            A("v_permlane32_swap_b32 %s, %s" % (v(HOLD), v(HOLD + 1)))
            A("v_add_f32 %s, %s, %s" % (v(HOLD), v(HOLD), v(HOLD + 1)))
            A("buffer_store_dword %s, %s, %s, s64 offen sc1" % (v(HOLD), v(V_L4), WSR))
        else:
            A("buffer_store_dwordx4 %s, %s, %s, s64 offen" % (v(PP, 4), v(V_RM), BR_))
        A("s_add_u32 s92, s92, 1")

    A("L_%s_wait:" % name)
    A("s_add_u32 s86, s%d, 1" % S_STEP)
    A("buffer_load_dword %s, %s, %s, 0 offen sc1" % (v(T), v(V_FP), WSR))
    A("s_waitcnt vmcnt(0)")
    if wo:
        set_flag(A, V_FL, T + 1, 92)
    A("s_cmp_eq_u32 s%d, 64" % S_STEP)
    A("s_cbranch_scc1 L_end")
    poll_flags(A, V_FP, T, 86, "fp", preissued=1)
    loads()
    A("L_%s_top:" % name)
    stamp(A, cfg, name + "a")
    A("s_lshl_b32 s64, s%d, 16" % S_STEP)
    if wo:
        A("buffer_load_dwordx4 %s, %s, %s, s64 offen" % (v(RES, 4), v(V_RM), BR_))
    else:
        A("s_add_u32 s64, s64, 0x%x" % HF)
        A("buffer_load_dwordx4 %s, %s, %s, s64 offen sc1" % (v(RES, 4), v(V_HF), WSR))
    A("buffer_load_dword %s, %s, %s, 0 offen sc1" % (v(T), v(V_FP), WSR))
    A("s_add_u32 s86, s%d, 2" % S_STEP)
    A("s_and_b32 s85, s%d, 3" % S_STEP)
    A("s_lshl_b32 s85, s85, 17")
    A("s_xor_b32 s91, s85, 0x40000")
    A("s_add_u32 s85, s85, 0x%x" % (RING_X + (0 if wo else 0x80000)))
    A("s_add_u32 s91, s91, 0x%x" % (RING_X + (0 if wo else 0x80000)))
    for ks in range(NK):
        A("s_waitcnt vmcnt(%d)" % (NK + 1 - ks))
        for f in range(2):
            d = v(ACC + 16 * f, 16)
            A("v_mfma_f32_32x32x16_bf16 %s, %s, %s, %s" % (d, a(8 * ks + 4 * f, 4), v(FR + 4 * ks, 4), "0" if ks == 0 else d))
    stamp(A, cfg, name + "b")
    A("s_waitcnt vmcnt(0)")
    if wo:
        set_flag(A, V_FL, T + 1, 92)
    A("v_cmp_gt_u32 vcc, s86, %s" % v(T))
    A("s_cmp_eq_u64 vcc, 0")
    A("s_cselect_b32 s87, 1, 0")
    nop, nop2 = A.label("np"), A.label("np2")
    A("s_cmp_lg_u32 s88, 0")
    A("s_cbranch_scc1 %s" % nop)
    A("s_cmp_eq_u32 s92, s%d" % S_STEP)
    A("s_cbranch_scc1 %s" % nop2)
    finish()
    A(nop2 + ":")
    A("s_cmp_eq_u32 s87, 0")
    A("s_cbranch_scc1 %s" % nop)
    loads()
    A(nop + ":")
    A("s_barrier")
    for f in range(2):
        for j in range(4):
            A("ds_write_b128 %s, %s offset:%d" % (v(V_RW), v(ACC + 16 * f + 4 * j, 4), 2048 * j + 512 * f))
    A("s_waitcnt lgkmcnt(0)")
    A("s_barrier")
    for f in range(2):
        for k in range(4):
            A("ds_read_b128 %s, %s offset:%d" % (v(ACC + 16 * f + 4 * k, 4), v(V_RR), 8192 * k + 512 * f))
    for f in range(2):
        b = ACC + 16 * f
        A("s_waitcnt lgkmcnt(%d)" % (4 * (1 - f)))
        for (x, y) in ((0, 4), (8, 12), (0, 8)):
            for r in (0, 2):
                A("v_pk_add_f32 %s, %s, %s" % (v(b + x + r, 2), v(b + x + r, 2), v(b + y + r, 2)))
    fin, join = A.label("fin"), A.label("join")
    A("s_cmp_eq_u32 s88, 0")
    A("s_cbranch_scc1 %s" % fin)
    for f in range(2):
        for r in range(4):
            A("v_min_u32 %s, s%d, %s" % (v(ACC + 16 * f + r), S_CLAMP, v(ACC + 16 * f + r)))
        A("buffer_store_dwordx4 %s, %s, %s, s85 offen offset:%d sc1" % (v(ACC + 16 * f, 4), v(V_OUT), WSR, 512 * f))
    for r in range(4):
        A("v_mov_b32 %s, -1" % v(PP + r))
    for f in range(2):
        A("buffer_store_dwordx4 %s, %s, %s, s91 offen offset:%d sc1" % (v(PP, 4), v(V_OUT), WSR, 512 * f))
    A("s_cmp_eq_u32 s87, 0")
    A("s_cbranch_scc1 %s" % join)
    loads()
    A("s_branch %s" % join)
    A(fin + ":")
    A("s_mov_b32 s95, s85")
    for x in pl(95):
        A(x)
    for d in range(4):
        b = ACC + 16 * (d // 2) + 2 * (d % 2)
        A("v_lshlrev_b32 %s, 16, %s" % (v(HOLD + 2 * d), v(RES + d)))
        A("v_and_b32 %s, 0xffff0000, %s" % (v(HOLD + 2 * d + 1), v(RES + d)))
        A("v_pk_add_f32 %s, %s, %s" % (v(HOLD + 2 * d, 2), v(HOLD + 2 * d, 2), v(b, 2)))
    A("s_cmp_lg_u32 s87, 0")
    A("s_cbranch_scc1 %s" % join)
    A("s_waitcnt vmcnt(0)")
    finish()
    A(join + ":")
    stamp(A, cfg, name + "c")
    stamp_flush(A, cfg, ACC + 8, 3)
    A("s_add_u32 s%d, s%d, 1" % (S_STEP, S_STEP))
    A("s_cmp_lg_u32 s87, 0")
    A("s_cbranch_scc1 L_%s_top" % name)
    A("s_branch L_%s_wait" % name)


def role_f1(A, cfg, census):
    V_L16, V_FL, V_FH, V_DM, V_SW, V_SR, V_RD = 2, 3, 4, 5, 6, 7, 8
    ACC, CS, FR, T, ST, SL = 16, 32, 48, 96, 120, 128
    DEPTH = 6
    L_ST = 131072
    A("L_role_f1:")
    A("s_bfe_u32 s80, s%d, 0x10005" % S_IDX)
    A("s_mul_i32 s80, s80, 28")
    A("s_and_b32 s64, s%d, 31" % S_IDX)
    A("s_add_u32 s80, s80, s64")
    srd(A, SRD_A, P_WG, 1024 * 7168)
    srd(A, SRD_B, P_WU, 1024 * 7168)
    A("s_lshl_b32 s82, s80, 2")
    A("s_add_u32 s82, s82, s%d" % S_W)
    A("v_lshrrev_b32 v20, 3, v0")
    A("s_lshl_b32 s64, s%d, 4" % S_W)
    A("v_add_u32 v20, s64, v20")
    A("v_mul_u32_u24 v20, 7168, v20")
    A("s_lshl_b32 s64, s80, 7")
    A("v_add_u32 v20, s64, v20")
    A("v_bfe_u32 v21, v0, 4, 1")
    A("v_lshlrev_b32 v21, 1, v21")
    A("v_and_b32 v22, 7, v0")
    A("v_xor_b32 v21, v21, v22")
    A("v_xor_b32 v22, 4, v21")
    A("v_lshl_add_u32 v22, v22, 4, v20")
    A("v_lshl_add_u32 v20, v21, 4, v20")
    A("s_lshl_b32 s83, s%d, 11" % S_W)
    A("v_lshrrev_b32 v21, 5, v0")
    A("v_bfe_u32 v23, v0, 2, 2")
    A("v_lshl_add_u32 v21, v21, 3, v23")
    A("v_lshlrev_b32 v21, 7, v21")
    A("v_bfe_u32 v24, v0, 4, 1")
    A("v_lshl_add_u32 v21, v24, 13, v21")
    A("v_and_b32 v25, 1, v0")
    A("v_lshl_add_u32 v21, v25, 3, v21")
    A("v_bfe_u32 v25, v0, 1, 1")
    A("s_lshl_b32 s64, s%d, 1" % S_W)
    A("v_add_u32 v25, s64, v25")
    A("v_and_b32 v23, 2, v23")
    A("v_lshl_add_u32 v23, v24, 2, v23")
    A("v_xor_b32 v25, v25, v23")
    A("v_lshl_add_u32 v21, v25, 4, v21")
    A("v_lshlrev_b32 %s, 4, v0" % v(V_L16))
    for i in range(4):
        A("s_xor_b32 s64, s%d, %d" % (S_W, i))
        A("s_lshl_b32 s65, s64, 11")
        A("v_add_u32 %s, s65, v21" % v(48 + 4 * i))
        hi_copies(A, 48 + 4 * i)
        A("s_lshl_b32 s65, s64, 10")
        A("v_add_u32 %s, s65, %s" % (v(V_RD + i), v(V_L16)))
    flag_addr_own(A, V_FL, 0, S_IDX)
    A("s_lshl_b32 s81, s%d, 14" % S_W)
    A("v_add_u32 %s, s81, %s" % (v(V_DM), v(V_L16)))
    A("v_bfe_u32 v23, v0, 1, 1")
    A("v_bfe_u32 v24, v0, 2, 2")
    A("v_lshl_add_u32 v24, v23, 5, v24")
    A("s_lshl_b32 s64, s%d, 2" % S_W)
    A("s_add_u32 s64, s64, %d" % ID_WO)
    A("v_add_u32 v24, s64, v24")
    A("v_lshlrev_b32 v24, 7, v24")
    A("v_and_b32 v23, 3, v0")
    A("v_lshl_add_u32 %s, v23, 2, v24" % v(V_FH))
    A("v_and_b32 v23, 31, v0")
    A("v_lshlrev_b32 v23, 2, v23")
    A("v_add_u32 %s, %d, v23" % (v(V_SR), L_ST))
    A("v_and_b32 v23, 15, v0")
    A("v_lshlrev_b32 v23, 4, v23")
    A("s_lshl_b32 s64, s%d, 8" % S_W)
    A("s_add_u32 s64, s64, %d" % L_ST)
    A("v_add_u32 %s, s64, v23" % v(V_SW))
    A("s_lshl_b32 s89, s%d, 12" % S_W)
    A("s_add_u32 s89, s89, 0x%x" % HS)
    A("s_lshl_b32 s82, s82, 10")
    A("s_add_u32 s82, s82, 0x%x" % ACT)
    late_start(A, cfg, census, 30)
    order = [16 * w_ + 4 * q + i for q in range(4) for w_ in range(4) for i in range(4)]
    units = []
    for u in range(16):
        n0 = order.index(4 * u)
        units.append(dict(slabs=[(sr, va, (64 * u + 8 * k) * 7168, 8192 * m + 1024 * k) for m, (sr, va) in enumerate(((SRD_A, 20), (SRD_B, 22))) for k in range(2)],
                          reads=[(256 + 4 * (n0 + i) + 2 * hf, 48 + 4 * i, 512 * hf) for i in range(4) for hf in range(2)]))
    load_weights_tr(A, units, 16, cfg.get("lslots", 8), 83, shared=True)
    A("s_mov_b32 s94, 0x3f803f80")
    for r in range(4):
        A("v_mov_b32 %s, s94" % v(FR + r))
    for n in range(64):
        A("v_mfma_f32_32x32x16_bf16 %s, %s, %s, %s" % (v(CS, 16), a(4 * n, 4), v(FR, 4), "0" if n == 0 else v(CS, 16)))
    A("s_barrier")
    A("s_mov_b32 s%d, 0" % S_STEP)
    A("s_mov_b32 s84, 0x%x" % HF)
    A("s_mov_b32 s85, s81")
    A("s_mov_b32 s92, 0xc0135761")
    A("s_mov_b32 s93, 0xbdd2d3e8")
    A("s_mov_b32 s95, 0x3a800000")

    def fetch_adv():
        A("s_add_u32 s84, s84, 0x10000")
        A("s_xor_b32 s85, s85, 0x10000")

    A("L_f1_wait:")
    A("s_add_u32 s86, s%d, 1" % S_STEP)
    A("buffer_load_dword %s, %s, %s, 0 offen sc1" % (v(T + 16), v(V_FH), WSR))
    A("s_waitcnt vmcnt(0)")
    set_flag(A, V_FL, T + 17, S_STEP)
    A("s_cmp_eq_u32 s%d, 64" % S_STEP)
    A("s_cbranch_scc1 L_end")
    poll_flags(A, V_FH, T + 16, 86, "fh", preissued=1)
    for g in dma_block(A, V_DM, 85, 84, 16):
        for t in g:
            A(t)
    fetch_adv()
    A("L_f1_top:")
    stamp(A, cfg, "ga")
    A("buffer_load_dword %s, %s, %s, 0 offen sc1" % (v(T + 16), v(V_FH), WSR))
    A("s_add_u32 s86, s%d, 2" % S_STEP)
    for k in range(4):
        A("buffer_load_dwordx4 %s, %s, %s, s89 offen offset:%d sc1" % (v(SL + 4 * k, 4), v(V_L16), WSR, 1024 * k))
    A("s_add_u32 s89, s89, 0x4000")
    L = Cnt(A, "lgkmcnt", 15)

    def rd(n):
        L.issue(n, "ds_read_b128 %s, %s offset:%d" % (v(FR + 4 * (n % DEPTH), 4), v(V_RD + n % 4), 1024 * order[n & ~3]))
    issued = 0
    stat = []
    for (x, y) in ((0, 4), (8, 12), (0, 8)):
        for r in (0, 2):
            stat.append("v_pk_add_f32 %s, %s, %s" % (v(SL + x + r, 2), v(SL + x + r, 2), v(SL + y + r, 2)))
    for sw in ("v_permlane16_swap_b32", "v_permlane32_swap_b32"):
        stat += ["v_mov_b32 %s, %s" % (v(SL + 4 + r), v(SL + r)) for r in range(4)]
        stat += ["%s %s, %s" % (sw, v(SL + r), v(SL + 4 + r)) for r in range(4)]
        stat += ["v_pk_add_f32 %s, %s, %s" % (v(SL + r, 2), v(SL + r, 2), v(SL + 4 + r, 2)) for r in (0, 2)]
    stat.append(lambda: L.issue("st", "ds_write_b128 %s, %s" % (v(V_SW), v(SL, 4))))
    stat.append("v_add_u32 %s, 128, %s" % (v(V_SR + 5), v(V_SR)))
    for n in range(64):
        while issued < 64 and issued < n + DEPTH - 2 + (2 if n == 0 else 0):
            if issued % 16 == 0:
                if issued > n + 2:
                    break
                A("s_waitcnt vmcnt(%d)" % (17 - 4 * (issued // 16)))
                A("s_barrier")
            rd(issued)
            issued += 1
        L.wait(n)
        d = v(ACC, 16)
        fr = FR + 4 * (n % DEPTH)
        A("v_mfma_f32_32x32x16_bf16 %s, %s, %s, %s" % (d, a(4 * n, 4), v(fr, 4), "0" if n == 0 else d))
        if n > 48:
            for _ in range(3):
                if stat:
                    x = stat.pop(0)
                    x() if callable(x) else A(x)
        if n == 47:
            A("s_waitcnt vmcnt(0)")
            set_flag(A, V_FL, T + 17, S_STEP)
            A("v_cmp_gt_u32 vcc, s86, %s" % v(T + 16))
            A("s_mov_b32 s87, 0")
            nop = A.label("np")
            A("s_cbranch_vccnz %s" % nop)
            for g in dma_block(A, V_DM, 85, 84, 16):
                for t in g:
                    A(t)
            fetch_adv()
            A("s_mov_b32 s87, 1")
            A(nop + ":")
        if n == 62:
            assert not stat
            L.wait("st")
            A("s_barrier")
            for k in range(2):
                L.issue("sr", "ds_read2st64_b32 %s, %s offset0:%d offset1:%d" % (v(T + 2 * k, 2), v(V_SR), 2 * k, 2 * k + 1))
                L.issue("sr", "ds_read2st64_b32 %s, %s offset0:%d offset1:%d" % (v(T + 4 + 2 * k, 2), v(V_SR + 5), 2 * k, 2 * k + 1))
    stamp(A, cfg, "gb")
    for i in range(4):
        A("v_xor_b32 %s, 0x10000, %s" % (v(V_RD + i), v(V_RD + i)))
    A("v_xor_b32 %s, 1024, %s" % (v(V_SW), v(V_SW)))
    A("v_xor_b32 %s, 1024, %s" % (v(V_SR), v(V_SR)))
    A("v_mov_b32 %s, s92" % v(T + 8))
    A("s_waitcnt lgkmcnt(0)")
    A("v_pk_add_f32 %s, %s, %s" % (v(T, 2), v(T, 2), v(T + 2, 2)))
    A("v_pk_add_f32 %s, %s, %s" % (v(T + 4, 2), v(T + 4, 2), v(T + 6, 2)))
    A("v_add_f32 %s, %s, %s" % (v(T), v(T), v(T + 1)))
    A("v_add_f32 %s, %s, %s" % (v(T + 1), v(T + 4), v(T + 5)))
    A("v_mul_f32 %s, s95, %s" % (v(ST), v(T)))
    A("v_mul_f32 %s, s95, %s" % (v(T + 1), v(T + 1)))
    A("v_fma_f32 %s, -%s, %s, %s" % (v(T + 1), v(ST), v(ST), v(T + 1)))
    A("v_max_f32 %s, 0, %s" % (v(T + 1), v(T + 1)))
    A("v_add_f32 %s, 0x3727c5ac, %s" % (v(T + 1), v(T + 1)))
    A("v_rsq_f32 %s, %s" % (v(ST + 2), v(T + 1)))
    for i in range(0, 16, 2):
        A("v_pk_fma_f32 %s, %s, %s, %s op_sel_hi:[1,0,1] neg_lo:[0,1,0] neg_hi:[0,1,0]" % (v(ACC + i, 2), v(CS + i, 2), v(ST, 2), v(ACC + i, 2)))
    for i in range(0, 16, 2):
        A("v_pk_mul_f32 %s, %s, %s op_sel_hi:[1,0]" % (v(ACC + i, 2), v(ACC + i, 2), v(ST + 2, 2)))
    for i in range(0, 8, 2):
        A("v_pk_mul_f32 %s, %s, %s" % (v(T + i, 2), v(ACC + i, 2), v(ACC + i, 2)))
    for i in range(8):
        A("v_fma_f32 %s, %s, s93, %s" % (v(T + i), v(T + i), v(T + 8)))
    for i in range(0, 8, 2):
        A("v_pk_mul_f32 %s, %s, %s" % (v(T + i, 2), v(T + i, 2), v(ACC + i, 2)))
    for i in range(8):
        A("v_exp_f32 %s, %s" % (v(T + i), v(T + i)))
    for i in range(8):
        A("v_add_f32 %s, 1.0, %s" % (v(T + i), v(T + i)))
    for i in range(8):
        A("v_rcp_f32 %s, %s" % (v(T + i), v(T + i)))
    for i in range(0, 8, 2):
        A("v_pk_mul_f32 %s, %s, %s" % (v(T + i, 2), v(T + i, 2), v(ACC + i, 2)))
    for i in range(0, 8, 2):
        A("v_pk_mul_f32 %s, %s, %s" % (v(T + i, 2), v(T + i, 2), v(ACC + 8 + i, 2)))
    for i in range(4):
        A("v_cvt_pk_bf16_f32 %s, %s, %s" % (v(T + 12 + i), v(T + 2 * i), v(T + 2 * i + 1)))
    A("buffer_store_dwordx4 %s, %s, %s, s82 offen sc1" % (v(T + 12, 4), v(V_L16), WSR))
    stamp(A, cfg, "gc")
    stamp_flush(A, cfg, T + 18, 3)
    A("s_add_u32 s82, s82, %d" % (224 * 1024))
    A("s_add_u32 s%d, s%d, 1" % (S_STEP, S_STEP))
    A("s_cmp_lg_u32 s87, 0")
    A("s_cbranch_scc1 L_f1_top")
    A("s_branch L_f1_wait")


def role_aux(A, cfg, census):
    V_FL, V_X, V_XN, V_P, V_HN, V_FP, V_ST, V_SR = 2, 3, 4, 5, 6, 7, 8, 9
    XR, PA, PB, F, T, OUT = 160, 32, 64, 96, 128, 144
    A("L_role_aux:")
    A("s_bfe_u32 s80, s%d, 0x10005" % S_IDX)
    A("s_lshl_b32 s80, s80, 2")
    A("s_and_b32 s81, s%d, 3" % S_IDX)
    A("s_add_u32 s80, s80, s81")
    srd(A, SRD_A, P_X, 2048 * 2048)
    flag_addr_own(A, V_FL, 0, S_IDX)
    A("v_and_b32 v20, 7, v0")
    A("v_lshrrev_b32 v21, 3, v0")
    A("s_lshl_b32 s64, s%d, 5" % S_W)
    A("v_add_u32 v22, s64, v21")
    A("v_lshlrev_b32 v23, 11, v20")
    A("v_lshl_add_u32 %s, v22, 4, v23" % v(V_X))
    A("v_lshlrev_b32 v23, 4, v20")
    A("v_lshl_add_u32 %s, v22, 8, v23" % v(V_XN))
    A("v_lshlrev_b32 %s, 5, v20" % v(V_SR))
    A("s_lshl_b32 s64, s%d, 3" % S_W)
    A("v_add_u32 %s, s64, %s" % (v(V_ST), v(V_SR)))
    A("s_mov_b32 s90, 0xffff0000")
    A("s_mov_b32 s91, 0x3b800000")
    A("s_mov_b32 s92, 0x3a800000")
    A("s_mov_b32 s93, 0x3727c5ac")
    A("s_mov_b32 s94, 0x43800000")

    def xsum(r):
        A("v_add_f32_dpp %s, %s, %s row_ror:8 row_mask:0xf bank_mask:0xf" % (v(r), v(r), v(r)))
        for sw in ("v_permlane16_swap_b32", "v_permlane32_swap_b32"):
            A("v_mov_b32 %s, %s" % (v(r + 1), v(r)))
            A("%s %s, %s" % (sw, v(r), v(r + 1)))
            A("v_add_f32 %s, %s, %s" % (v(r), v(r), v(r + 1)))

    def tree(dst, sq):
        for k in range(4):
            if sq:
                A("v_mul_f32 %s, %s, %s" % (v(dst + k), v(F + k), v(F + k)))
            else:
                A("v_add_f32 %s, %s, %s" % (v(dst + k), v(F + k), v(F + 4 + k)))
        for i in range(4 if sq else 8, 32):
            if sq:
                A("v_fmac_f32 %s, %s, %s" % (v(dst + i % 4), v(F + i), v(F + i)))
            else:
                A("v_add_f32 %s, %s, %s" % (v(dst + i % 4), v(dst + i % 4), v(F + i)))
        A("v_add_f32 %s, %s, %s" % (v(dst), v(dst), v(dst + 1)))
        A("v_add_f32 %s, %s, %s" % (v(dst + 2), v(dst + 2), v(dst + 3)))
        A("v_add_f32 %s, %s, %s" % (v(dst), v(dst), v(dst + 2)))

    def unpack(src):
        for d in range(16):
            A("v_lshlrev_b32 %s, 16, %s" % (v(F + 2 * d), v(src + d)))
            A("v_and_b32 %s, s90, %s" % (v(F + 2 * d + 1), v(src + d)))

    def layernorm():
        tree(T, False)
        xsum(T)
        A("v_mul_f32 %s, s91, %s" % (v(T + 4), v(T)))
        for i in range(32):
            A("v_sub_f32 %s, %s, %s" % (v(F + i), v(F + i), v(T + 4)))
        tree(T, True)
        xsum(T)
        A("v_mov_b32 %s, %s" % (v(T + 5), v(T)))
        A("ds_write_b64 %s, %s" % (v(V_ST), v(T + 4, 2)))
        A("s_waitcnt lgkmcnt(0)")
        A("s_barrier")
        A("ds_read_b128 %s, %s" % (v(T + 8, 4), v(V_SR)))
        A("ds_read_b128 %s, %s offset:16" % (v(T + 12, 4), v(V_SR)))
        A("v_xor_b32 %s, 256, %s" % (v(V_ST), v(V_ST)))
        A("v_xor_b32 %s, 256, %s" % (v(V_SR), v(V_SR)))
        A("s_waitcnt lgkmcnt(0)")
        A("v_add_f32 %s, %s, %s" % (v(T), v(T + 8), v(T + 10)))
        A("v_add_f32 %s, %s, %s" % (v(T + 1), v(T + 12), v(T + 14)))
        A("v_add_f32 %s, %s, %s" % (v(T), v(T), v(T + 1)))
        A("v_mul_f32 %s, 0x3e800000, %s" % (v(T), v(T)))
        A("v_add_f32 %s, %s, %s" % (v(T + 1), v(T + 9), v(T + 11)))
        A("v_add_f32 %s, %s, %s" % (v(T + 2), v(T + 13), v(T + 15)))
        A("v_add_f32 %s, %s, %s" % (v(T + 1), v(T + 1), v(T + 2)))
        A("v_mov_b32 %s, 0" % v(T + 2))
        for k in range(4):
            A("v_sub_f32 %s, %s, %s" % (v(T + 3), v(T + 8 + 2 * k), v(T)))
            A("v_fmac_f32 %s, %s, %s" % (v(T + 2), v(T + 3), v(T + 3)))
        A("v_fma_f32 %s, %s, s94, %s" % (v(T + 1), v(T + 2), v(T + 1)))
        A("v_mov_b32 %s, s93" % v(T + 2))
        A("v_fma_f32 %s, %s, s92, %s" % (v(T + 1), v(T + 1), v(T + 2)))
        A("v_rsq_f32 %s, %s" % (v(T + 1), v(T + 1)))
        A("v_sub_f32 %s, %s, %s" % (v(T + 4), v(T + 4), v(T)))
        A("v_mul_f32 %s, %s, %s" % (v(T + 4), v(T + 4), v(T + 1)))
        for d in range(16):
            for e in range(2):
                A("v_fma_f32 %s, %s, %s, %s" % (v(F + 2 * d + e), v(F + 2 * d + e), v(T + 1), v(T + 4)))
            A("v_cvt_pk_bf16_f32 %s, %s, %s" % (v(OUT + d), v(F + 2 * d), v(F + 2 * d + 1)))

    def xload(srd_, so, sc):
        for j in range(4):
            A("buffer_load_dwordx4 %s, %s, %s, s%d offen offset:%d%s" % (v(XR + 4 * j, 4), v(V_X), srd_, so, 128 * j, sc))

    A("s_lshl_b32 s84, s80, 14")
    A("s_mov_b32 s%d, 0" % S_STEP)
    xload(AR_, 84, "")
    A("s_waitcnt vmcnt(4)")
    census.early(A)
    census(A)
    A("s_waitcnt vmcnt(0)")
    A("L_ln1_top:")
    A("s_waitcnt vmcnt(4)")
    unpack(XR)
    A("s_lshr_b32 s64, s84, 16")
    A("s_lshl_b32 s64, s64, 16")
    A("s_bfe_u32 s65, s84, 0x1000f")
    A("s_lshl_b32 s65, s65, 15")
    A("s_add_u32 s64, s64, s65")
    A("s_bfe_u32 s65, s84, 0x1000e")
    A("s_lshl_b32 s65, s65, 7")
    A("s_add_u32 s64, s64, s65")
    A("s_add_u32 s85, s64, 0x%x" % XN)
    A("s_add_u32 s86, s85, 4096")
    A("s_add_u32 s84, s84, 0x20000")
    xload(AR_, 84, "")
    layernorm()
    A("s_waitcnt vmcnt(4)")
    A("v_mov_b32 %s, s%d" % (v(T), S_STEP))
    A("buffer_store_dword %s, %s, %s, 0 offen offset:64 sc1" % (v(T), v(V_FL), WSR))
    A("s_waitcnt vmcnt(1)")
    for j in range(4):
        A("buffer_store_dwordx4 %s, %s, %s, s%d offen offset:%d sc1" % (v(OUT + 4 * j, 4), v(V_XN), WSR, 85 + j // 2, 2048 * (j % 2)))
    A("s_add_u32 s%d, s%d, 1" % (S_STEP, S_STEP))
    A("s_cmp_lt_u32 s%d, 32" % S_STEP)
    A("s_cbranch_scc1 L_ln1_top")
    A("s_waitcnt vmcnt(0)")
    A("v_mov_b32 %s, s%d" % (v(T), S_STEP))
    A("buffer_store_dword %s, %s, %s, 0 offen offset:64 sc1" % (v(T), v(V_FL), WSR))

    A("s_endpgm")


ROLES = dict(qkv=role_qkv, f1=role_f1, aux=role_aux,
             wo=lambda A, cfg, census: role_proj(A, cfg, census, "wo"),
             f2=lambda A, cfg, census: role_proj(A, cfg, census, "f2"))
```

```python
import sys
from common import *
import chain
try:
    import stream
except ImportError:
    stream = None

WSR = "s[%d:%d]" % (SRD_WS, SRD_WS + 3)
DBR = "s[%d:%d]" % (SRD_DBG, SRD_DBG + 3)
TICK_LANES = [0, 16, 32, 36, 40, 44, 48, 52]
V_ONE, V_INI = 28, 29
L_TICK = 163832


INIT_LANES = [12, 28, 46, 60]


def make_census(cfg):
    def early(A):
        skip = A.label("ce")
        A("s_barrier")
        A("s_or_b32 s64, s%d, s%d" % (S_CENS, S_W))
        A("s_cbranch_scc1 %s" % skip)
        A("s_mov_b64 exec, 1")
        A("buffer_atomic_add v%d, v%d, %s, 0 offen" % (V_ONE, V_INI, DBR))
        A("s_mov_b64 exec, -1")
        A(skip + ":")

    def census(A):
        done, top = A.label("cd"), A.label("ct")
        A("s_cmp_lg_u32 s%d, 0" % S_CENS)
        A("s_cbranch_scc1 %s" % done)
        A("v_mbcnt_lo_u32_b32 v17, -1, 0")
        A("v_mbcnt_hi_u32_b32 v17, -1, v17")
        A("v_lshlrev_b32 v17, 2, v17")
        mi = sum(1 << l for l in INIT_LANES)
        A(top + ":")
        A("buffer_load_dword v18, v17, %s, 0 offen sc1" % DBR)
        A("s_mov_b32 s64, 0x%x" % (mi & 0xffffffff))
        A("s_mov_b32 s65, 0x%x" % (mi >> 32))
        A("s_waitcnt vmcnt(0)")
        A("v_cmp_ne_u32 vcc, 64, v18")
        A("s_and_b64 s[64:65], s[64:65], vcc")
        ok = A.label("co")
        A("s_cbranch_scc0 %s" % ok)
        spin(A, top)
        A(ok + ":")
        if not cfg.get("force_slow"):
            m = sum(1 << l for l in TICK_LANES)
            A("v_cmp_ne_u32 vcc, 32, v18")
            A("s_mov_b32 s64, 0x%x" % (m & 0xffffffff))
            A("s_mov_b32 s65, 0x%x" % (m >> 32))
            A("s_and_b64 s[64:65], s[64:65], vcc")
            A("s_cbranch_scc1 L_recensus")
        A(done + ":")
    census.early = early
    return census


def prologue(A, cfg, census):
    A("s_cmp_ge_u32 s2, 256")
    A("s_cbranch_scc1 L_end")
    A("s_load_dwordx16 s[8:23], s[0:1], 0")
    A("s_load_dwordx8 s[24:31], s[0:1], 64")
    A("s_load_dwordx4 s[32:35], s[0:1], 96")
    if not cfg.get("nocp"):
        A("s_getpc_b64 s[66:67]")
        A("L_pc:")
        A("s_lshr_b32 s64, s2, 3")
        A("s_lshl_b32 s64, s64, 8")
        A("v_add_u32 v30, s64, v0")
        A("v_lshlrev_b32 v30, 4, v30")
        A("v_min_u32 v30, L_last-L_pc-16, v30")
        A("global_load_dwordx4 v[248:251], v30, s[66:67]")
    A("s_getreg_b32 s%d, hwreg(HW_REG_XCC_ID)" % S_XCC)
    A("v_lshrrev_b32 v1, 6, v0")
    A("s_and_b32 s%d, s%d, 7" % (S_XCC, S_XCC))
    A("v_readfirstlane_b32 s%d, v1" % S_W)
    A("s_mov_b32 s%d, 0x05040100" % S_SELLO)
    A("s_mov_b32 s%d, 0x07060302" % S_SELHI)
    A("s_mov_b32 s%d, -2" % S_CLAMP)
    A("s_mov_b32 s%d, 0" % S_SPIN)
    A("s_mov_b32 s%d, 0" % S_CENS)
    A("s_mov_b32 s%d, %d" % (S_SLOW, 1 if cfg.get("force_slow") else 0))
    A("s_mov_b32 s%d, 0" % S_STEP)
    A("s_lshl_b32 s64, s%d, 6" % S_XCC)
    A("s_lshl_b32 s65, s%d, 4" % S_XCC)
    A("s_add_u32 s65, s65, 96")
    A("s_cmp_lt_u32 s%d, 2" % S_XCC)
    A("s_cselect_b32 s64, s64, s65")
    A("v_mov_b32 v3, s64")
    A("v_mov_b32 v2, 1")
    A("s_mul_i32 s64, s2, 7168")
    A("s_add_u32 s64, s64, 0x%x" % RING_P)
    A("v_lshl_add_u32 v11, v0, 4, s64")
    A("v_add_u32 v8, 4096, v11")
    for r in range(4):
        A("v_mov_b32 v%d, -1" % (12 + r))
    A("s_lshl_b32 s65, s2, 7")
    A("s_sub_u32 s65, s65, %d" % (192 * 16))
    A("v_lshl_add_u32 v9, v0, 4, s65")
    A("v_mov_b32 v10, 0x%x" % OOB)
    A("v_cmp_gt_u32 vcc, 200, v0")
    A("v_cndmask_b32 v9, v10, v9, vcc")
    A("v_cmp_gt_u32 vcc, 192, v0")
    A("v_cndmask_b32 v8, v9, v8, vcc")
    for r in range(4):
        A("v_cndmask_b32 v%d, 0, -1, vcc" % (4 + r))
    A("s_waitcnt lgkmcnt(0)")
    srd(A, SRD_WS, P_WS, WS_BYTES)
    srd(A, SRD_DBG, P_DBG, 256)
    if not cfg.get("notouch"):
        A("s_cmp_lg_u32 s%d, 1" % S_W)
        A("s_cbranch_scc1 L_notouch")
        A("s_mov_b64 exec, 15")
        A("v_and_b32 v30, 3, v0")
        A("v_lshlrev_b32 v30, 21, v30")
        A("v_and_b32 v31, 0x200000, v30")
        for k, ptr in enumerate((P_WQ, P_WK, P_WV, P_WO, P_WG, P_WU, P_WD)):
            A("global_load_dword v%d, v30, s[%d:%d]" % (240 + k, ptr, ptr + 1))
        A("global_load_dword v247, v31, s[%d:%d]" % (P_X, P_X + 1))
        A("s_mov_b64 exec, -1")
        A("L_notouch:")
    A("s_cmp_lg_u32 s%d, 0" % S_W)
    A("s_cbranch_scc1 L_notick")
    A("s_mov_b64 exec, 1")
    A("buffer_atomic_add v2, v3, %s, 0 offen sc0" % DBR)
    A("s_mov_b64 exec, -1")
    A("L_notick:")
    A("buffer_store_dwordx4 v[4:7], v8, %s, 0 offen sc1" % WSR)
    A("buffer_store_dwordx4 v[12:15], v11, %s, 0 offen sc1" % WSR)
    A("v_mov_b32 v3, 0x%x" % L_TICK)
    A("s_and_b32 s64, s2, 3")
    A("s_lshl_b32 s65, s64, 6")
    A("s_add_u32 s65, s65, 48")
    A("s_cmp_eq_u32 s64, 2")
    A("s_cselect_b32 s65, 184, s65")
    A("v_mov_b32 v%d, s65" % V_INI)
    A("v_mov_b32 v%d, 1" % V_ONE)
    A("s_cmp_lg_u32 s%d, 0" % S_W)
    A("s_cbranch_scc1 L_notick2")
    A("s_waitcnt vmcnt(2)")
    A("s_mov_b64 exec, 1")
    A("ds_write_b32 v3, v2")
    A("s_mov_b64 exec, -1")
    A("s_waitcnt lgkmcnt(0)")
    A("L_notick2:")
    A("s_barrier")
    A("ds_read_b32 v2, v3")
    A("s_waitcnt lgkmcnt(0)")
    A("v_readfirstlane_b32 s%d, v2" % S_TICK)
    if cfg.get("force_slow"):
        A("s_mov_b32 s%d, s2" % S_IDX)
        A("s_branch L_dispatch")
    else:
        A("s_lshl_b32 s%d, s%d, 5" % (S_IDX, S_XCC))
        A("s_add_u32 s%d, s%d, s%d" % (S_IDX, S_IDX, S_TICK))
        A("s_cmp_lt_u32 s%d, 32" % S_TICK)
        A("s_cbranch_scc1 L_dispatch")
        A("s_waitcnt vmcnt(0)")
        census.early(A)
        census(A)
        A("L_recensus:")
        A("s_mov_b32 s%d, s%d" % (S_IDX, S_TICK))
        for x in range(7):
            A("v_readlane_b32 s64, v18, %d" % TICK_LANES[x])
            A("s_cmp_gt_u32 s%d, %d" % (S_XCC, x))
            A("s_cselect_b32 s64, s64, 0")
            A("s_add_u32 s%d, s%d, s64" % (S_IDX, S_IDX))
        A("s_mov_b32 s%d, 1" % S_SLOW)
        A("s_mov_b32 s%d, 1" % S_CENS)
        A("s_waitcnt vmcnt(0) lgkmcnt(0)")
        A("s_barrier")
    A("L_dispatch:")
    A("v_mbcnt_lo_u32_b32 v0, -1, 0")
    A("v_mbcnt_hi_u32_b32 v0, -1, v0")
    c2 = dict(stamps=1) if cfg.get("pst") else cfg
    stamp(A, c2, 0)
    stamp_flush(A, c2, 2, 1, 7)
    on = cfg["roles"]
    tgt = lambda r: "L_role_" + r if r in on else "L_role_off"
    A("s_cmp_ge_u32 s%d, 64" % S_IDX)
    A("s_cbranch_scc1 L_disp2")
    A("s_bitcmp1_b32 s%d, 4" % S_IDX)
    A("s_cbranch_scc1 %s" % tgt("vo"))
    A("s_branch %s" % tgt("qk"))
    A("L_disp2:")
    A("s_and_b32 s64, s%d, 31" % S_IDX)
    A("s_cmp_ge_u32 s%d, 192" % S_IDX)
    A("s_cbranch_scc1 L_disp3")
    A("s_cmp_ge_u32 s64, 16")
    A("s_cbranch_scc1 %s" % tgt("qkv"))
    A("s_cmp_lt_u32 s%d, 128" % S_IDX)
    A("s_cbranch_scc1 %s" % tgt("wo"))
    A("s_branch %s" % tgt("f2"))
    A("L_disp3:")
    A("s_cmp_lt_u32 s64, 28")
    A("s_cbranch_scc1 %s" % tgt("f1"))
    A("s_branch %s" % tgt("aux"))


def role_off(A, census):
    A("L_role_off:")
    A("s_waitcnt vmcnt(0)")
    census.early(A)
    census(A)
    flag_addr_own(A, 2, 0, S_IDX)
    A("s_mov_b32 s70, 64")
    set_flag(A, 2, 3, 70)
    A("buffer_store_dword v3, v2, %s, 0 offen offset:64 sc1" % WSR)
    A("s_endpgm")


def generate(cfg):
    A = Asm()
    census = make_census(cfg)
    prologue(A, cfg, census)
    A("L_giveup:")
    if cfg.get("debug"):
        A("v_mov_b32 v2, 1")
        A("v_mov_b32 v3, 244")
        A("s_mov_b64 exec, 1")
        A("buffer_atomic_add v2, v3, %s, 0 offen" % DBR)
    A("L_end:")
    A("s_endpgm")
    allroles = dict(qk=chain.role_qk, vo=chain.role_vo)
    if stream:
        allroles.update(stream.ROLES)
    for r in cfg["roles"]:
        allroles[r](A, cfg, census)
    if len(cfg["roles"]) < 7:
        role_off(A, census)
    A("L_last:")
    A("s_endpgm")
    n = A.fix_hazards()
    ref = open("cdna_kernels/%s.s.ref" % NAME).read().split("\n")
    head = [l for l in ref if l.startswith(";") and "@launch" not in l and "Override" not in l and "grid=ceil" not in l]
    k = NAME + "_kernel"
    out = "\n".join(head) + "\n; @launch grid=(256,1,1) block=(256,1,1) lds=163840\n"
    out += '.amdgcn_target "amdgcn-amd-amdhsa--gfx950"\n.text\n.globl %s\n.p2align 8\n.type %s,@function\n%s:\n' % (k, k, k)
    out += A.text()
    out += '''.section .rodata,"a"
.p2align 6
.amdhsa_kernel %s
  .amdhsa_next_free_vgpr 512
  .amdhsa_next_free_sgpr 102
  .amdhsa_accum_offset 256
  .amdhsa_group_segment_fixed_size 0
  .amdhsa_kernarg_size 112
  .amdhsa_user_sgpr_count 2
  .amdhsa_user_sgpr_kernarg_segment_ptr 1
  .amdhsa_system_sgpr_workgroup_id_x 1
  .amdhsa_float_denorm_mode_32 3
.end_amdhsa_kernel
''' % k
    return out, n


if __name__ == "__main__":
    cfg = dict(roles=["qk", "vo", "wo", "f2", "qkv", "f1", "aux"])
    for kv in sys.argv[2:]:
        k_, v_ = kv.split("=")
        cfg[k_] = v_.split(",") if k_ in ("roles", "sp") else int(v_)
    text, n = generate(cfg)
    open(sys.argv[1], "w").write(text)
    print("wrote %s: %d bytes, %d lines, %d nops inserted" % (sys.argv[1], len(text), text.count("\n"), n))
```

```python
from asmlib import Asm, v, a, s, W

NAME = "sequential_preLN__memory_aug_recurrent_mem_tr__geglu_ffn__prompt"

WS_BYTES = 268435456
FLAGS = 0x0
RING_P = 0x10000
RING_O = 0x50000
RING_V = 0x90000
RING_X = 0xD0000
RING_END = 0x1D0000
XN = 0x200000
STAMPS = 0x700000
KVQ = 0x0C00000
OX = 0x4000000
HF = 0x6400000
HS = 0x6800000
ACT = 0x7000000

ID_WO, ID_F2, ID_QKV, ID_F1, ID_AUX = 64, 128, 80, 192, 220


def id_qkv_s(A, sr, st):
    A("s_lshr_b32 s%d, s%d, 4" % (st, sr))
    A("s_lshl_b32 s%d, s%d, 5" % (st, st))
    A("s_and_b32 s%d, s%d, 15" % (sr, sr))
    A("s_add_u32 s%d, s%d, s%d" % (sr, sr, st))
    A("s_add_u32 s%d, s%d, %d" % (sr, sr, ID_QKV))


P_X, P_MEM, P_WQ, P_WK, P_WV, P_WO = 8, 10, 12, 14, 16, 18
P_WG, P_WU, P_WD, P_OUT, P_DBG, P_WS = 24, 26, 28, 30, 32, 34
SRD_WS, SRD_DBG, SRD_A, SRD_B = 36, 40, 44, 48
S_W, S_IDX, S_SLOW, S_STEP, S_XCC, S_TICK, S_CENS, S_SPIN = 56, 57, 58, 59, 60, 61, 62, 63
S_SELLO, S_SELHI, S_CLAMP, S_SUB = 52, 53, 54, 55
S_T = 64
S_R = 80
SPIN_LIMIT = 1 << 17
OOB = 0x7FFF0000


class Cnt:
    def __init__(self, asm, name, mx):
        self.asm, self.name, self.mx = asm, name, mx
        self.q = []

    def issue(self, tag, text):
        self.asm(text)
        self.q.append(tag)

    def wait(self, tag):
        if tag not in self.q:
            return
        i = len(self.q) - 1 - self.q[::-1].index(tag)
        n = min(len(self.q) - 1 - i, self.mx)
        self.asm("s_waitcnt %s(%d)" % (self.name, n))
        self.q = self.q[len(self.q) - n:] if n else []

    def drain(self):
        self.asm("s_waitcnt %s(0)" % self.name)
        self.q = []


def srd(A, d, ptr, nbytes):
    A("s_mov_b32 s%d, s%d" % (d, ptr))
    A("s_and_b32 s%d, s%d, 0xffff" % (d + 1, ptr + 1))
    A("s_mov_b32 s%d, 0x%x" % (d + 2, nbytes))
    A("s_mov_b32 s%d, 0x20000" % (d + 3))


def srd_sel(A, d, ptr_true, ptr_false, nbytes):
    A("s_cselect_b32 s%d, s%d, s%d" % (d, ptr_true, ptr_false))
    A("s_cselect_b32 s%d, s%d, s%d" % (d + 1, ptr_true + 1, ptr_false + 1))
    A("s_and_b32 s%d, s%d, 0xffff" % (d + 1, d + 1))
    A("s_mov_b32 s%d, 0x%x" % (d + 2, nbytes))
    A("s_mov_b32 s%d, 0x20000" % (d + 3))


def spin(A, again):
    A("s_add_u32 s%d, s%d, 1" % (S_SPIN, S_SPIN))
    A("s_cmp_lt_u32 s%d, 0x%x" % (S_SPIN, SPIN_LIMIT))
    A("s_cbranch_scc1 %s" % again)
    A("s_branch L_giveup")


def check_sent(A, regs, tmp):
    regs = list(regs)
    if len(regs) == 2:
        A("v_max_u32 %s, %s, %s" % (v(tmp), v(regs[0]), v(regs[1])))
        rest = []
    else:
        A("v_max3_u32 %s, %s, %s, %s" % (v(tmp), v(regs[0]), v(regs[1]), v(regs[2])))
        rest = regs[3:]
    while len(rest) >= 2:
        A("v_max3_u32 %s, %s, %s, %s" % (v(tmp), v(tmp), v(rest[0]), v(rest[1])))
        rest = rest[2:]
    if rest:
        A("v_max_u32 %s, %s, %s" % (v(tmp), v(tmp), v(rest[0])))
    A("v_cmp_eq_u32 vcc, -1, %s" % v(tmp))


def poll_data(A, loads, regs, tmp, stem):
    top, ok = A.label(stem), A.label(stem + "_ok")
    A(top + ":")
    for t in loads:
        A(t)
    A("s_waitcnt vmcnt(0)")
    check_sent(A, regs, tmp)
    A("s_cbranch_vccz %s" % ok)
    spin(A, top)
    A(ok + ":")


def poll_flags(A, voff, vtmp, starget, stem, preissued=None):
    top, ok = A.label(stem), A.label(stem + "_ok")
    if preissued is not None:
        A("s_waitcnt vmcnt(%d)" % preissued)
        A("v_cmp_gt_u32 vcc, s%d, %s" % (starget, v(vtmp)))
        A("s_cbranch_vccz %s" % ok)
    A(top + ":")
    A("buffer_load_dword %s, %s, s[%d:%d], 0 offen sc1" % (v(vtmp), v(voff), SRD_WS, SRD_WS + 3))
    A("s_waitcnt vmcnt(0)")
    A("v_cmp_gt_u32 vcc, s%d, %s" % (starget, v(vtmp)))
    A("s_cbranch_vccz %s" % ok)
    spin(A, top)
    A(ok + ":")


def local_store(A, text):
    sl, dn = A.label("sl"), A.label("sd")
    A("s_cmp_lg_u32 s%d, 0" % S_SLOW)
    A("s_cbranch_scc1 %s" % sl)
    for t in text:
        A(t)
    A("s_branch %s" % dn)
    A(sl + ":")
    for t in text:
        A(t + " sc1")
    A(dn + ":")


def set_flag(A, voff, vtmp, sval):
    A("v_mov_b32 %s, s%d" % (v(vtmp), sval))
    A("buffer_store_dword %s, %s, s[%d:%d], 0 offen sc1" % (v(vtmp), v(voff), SRD_WS, SRD_WS + 3))


def flag_addr_own(A, vd, vlane, sid):
    A("s_lshl_b32 s%d, s%d, 7" % (S_T, sid))
    A("s_lshl_b32 s%d, s%d, 2" % (S_T + 1, S_W))
    A("s_add_u32 s%d, s%d, s%d" % (S_T, S_T, S_T + 1))
    A("v_mov_b32 %s, 0x%x" % (v(vd), OOB))
    A("v_mov_b32 v255, s%d" % S_T)
    A("v_cmp_eq_u32 vcc, 0, %s" % v(vlane))
    A("v_cndmask_b32 %s, %s, v255, vcc" % (v(vd), v(vd)))


def stamp(A, cfg, name):
    if cfg.get("stamps"):
        if isinstance(name, int):
            A("s_memrealtime s[%d:%d]" % (68 + 2 * name, 69 + 2 * name))
        elif name in cfg["sp"]:
            k = cfg["sp"].index(name) % 6
            A("%s s[%d:%d]" % ("s_memtime" if cfg.get("cyc") else "s_memrealtime", 68 + 2 * k, 69 + 2 * k))


def pstamp(A, cfg):
    if cfg.get("pst"):
        for k, st in enumerate((0, 8, 60)):
            l = A.label("ps")
            A("s_cmp_lg_u32 s%d, %d" % (S_STEP, st))
            A("s_cbranch_scc1 %s" % l)
            A("s_memrealtime s[%d:%d]" % (68 + 4 * k, 69 + 4 * k))
            if k:
                A("s_memtime s[%d:%d]" % (66 + 4 * k, 67 + 4 * k))
            A(l + ":")


def dbg_time(A, cfg, vr, regs, first, idx, wave):
    if not cfg.get("dst"):
        return
    skip = A.label("dt")
    A("s_memrealtime s[78:79]")
    A("s_waitcnt lgkmcnt(0)")
    A("s_cmp_lg_u32 s%d, %d" % (S_IDX, idx))
    A("s_cbranch_scc1 %s" % skip)
    A("s_cmp_lg_u32 s%d, %d" % (S_W, wave))
    A("s_cbranch_scc1 %s" % skip)
    A("v_mbcnt_lo_u32_b32 %s, -1, 0" % v(vr + 1))
    A("v_lshlrev_b32 %s, 2, %s" % (v(vr + 1), v(vr + 1)))
    for k, (r, base) in enumerate(regs):
        A("s_sub_u32 s64, s%d, s%d" % (r, base))
        A("v_writelane_b32 %s, s64, %d" % (v(vr), k))
    A("s_mov_b64 exec, %d" % ((1 << len(regs)) - 1))
    A("buffer_store_dword %s, %s, s[%d:%d], 0 offen offset:%d" % (v(vr), v(vr + 1), SRD_DBG, SRD_DBG + 3, 4 * first))
    A("s_mov_b64 exec, -1")
    A(skip + ":")


def pstamp_flush(A, cfg, vr):
    dbg_time(A, cfg, vr, [(68, 100), (76, 72), (74, 70), (78, 100)], 1, 0, 0)
    if cfg.get("pst") and not cfg.get("dst"):
        A("s_memrealtime s[78:79]")
        A("s_mov_b32 s%d, 0" % S_STEP)
        stamp_flush(A, dict(stamps=1), vr, 6)


def stamp_flush(A, cfg, vr, n=6, first=0, sreg=None):
    if not cfg.get("stamps"):
        return
    st = S_STEP if sreg is None else sreg
    skip = A.label("st")
    A("s_waitcnt lgkmcnt(0)")
    A("s_cmp_lg_u32 s%d, 0" % S_W)
    A("s_cbranch_scc1 %s" % skip)
    A("s_lshl_b32 s4, s%d, 12" % S_IDX)
    A("s_lshl_b32 s5, s%d, 5" % st)
    A("s_add_u32 s4, s4, s5")
    A("s_add_u32 s4, s4, 0x%x" % (STAMPS + 4 * first))
    A("v_mbcnt_lo_u32_b32 %s, -1, 0" % v(vr + 1))
    A("v_lshlrev_b32 %s, 2, %s" % (v(vr + 1), v(vr + 1)))
    for k in range(n):
        A("v_writelane_b32 %s, s%d, %d" % (v(vr), 68 + 2 * k, k))
    A("s_mov_b64 exec, %d" % ((1 << n) - 1))
    A("buffer_store_dword %s, %s, s[%d:%d], s4 offen" % (v(vr), v(vr + 1), SRD_WS, SRD_WS + 3))
    A("s_mov_b64 exec, -1")
    A(skip + ":")


def load_weights(A, units, pool, temps, ldsbuf=None, maxfly=30, wait_every=2, early=None):
    first = {}
    for n, u in enumerate(units):
        for d, _, _ in u["outs"]:
            if not isinstance(d, tuple) and d < 256:
                first.setdefault(d, n)
    busy = set()
    land = {}
    issued = 0
    tk = [0]

    def alloc(n, cnt):
        for r in sorted(pool, reverse=True):
            if r % 2:
                continue
            rr = range(r, r + cnt)
            if all((x in pool) and (x not in busy) and first.get(x, 1 << 30) > n for x in rr):
                return r
        return None

    def issue(n):
        wd = units[n]["width"]
        r = alloc(n, 2 * wd)
        if r is None:
            return False
        busy.update(range(r, r + 2 * wd))
        land[n] = r
        for k in range(2):
            for t in units[n]["loads"][k](r + k * wd):
                A(t)
        return True

    waited = -1
    for n, u in enumerate(units):
        while issued < len(units) and issued - n < maxfly and issue(issued):
            issued += 1
        assert issued > n, "loader ran out of landing registers"
        if waited < n:
            waited = min(n + wait_every - 1, issued - 1)
            A("s_waitcnt vmcnt(%d)" % (2 * (issued - 1 - waited)))
            if n == 0 and early:
                early(A)
        r, wd = land[n], u["width"]
        for d, c, sel in u["outs"]:
            if isinstance(d, tuple):
                dv = ldsbuf + d[1]
            elif d >= 256:
                dv = temps[tk[0] % len(temps)]
                tk[0] += 1
            else:
                dv = d
            A("v_perm_b32 %s, %s, %s, s%d" % (v(dv), v(r + wd + c), v(r + c), sel))
            if not isinstance(d, tuple) and d >= 256:
                A("v_accvgpr_write_b32 %s, %s" % (W(d), v(dv)))
        for t in u.get("post", ()):
            A(t)
        busy.difference_update(range(r, r + 2 * wd))


def load_weights_tr(A, units, ukb, nslots, s_ring, early=None, shared=False, cfg={}):
    V = Cnt(A, "vmcnt", 63)
    L = Cnt(A, "lgkmcnt", 15)
    issued = 0

    def issue(n):
        if n >= nslots and not shared:
            L.wait(("u", n - nslots))
        for srd_, va, off, lo in units[n]["slabs"]:
            A("s_add_u32 m0, s%d, %d" % (s_ring, (n % nslots) * ukb * 1024 + lo))
            A("s_mov_b32 s%d, 0x%x" % (S_T, off))
            V.issue(("u", n), "buffer_load_dwordx4 %s, s[%d:%d], s%d offen nt lds" % (v(va), srd_, srd_ + 3, S_T))

    def ahead(n):
        nonlocal issued
        while issued < len(units) and issued < n + nslots - (1 if n else 0) and len(V.q) + len(units[issued]["slabs"]) <= 60:
            issue(issued)
            issued += 1

    for n, u in enumerate(units):
        if not shared or n == 0:
            ahead(n)
        V.wait(("u", n))
        stamp(A, cfg, "u%d" % n)
        if shared:
            L.wait(("u", n - 1))
            A("s_barrier")
            ahead(n + 1 if n else 0)
        if n == 0 and early:
            early(A)
        for dst, vl, off in u["reads"]:
            L.issue(("u", n), "ds_read_b64_tr_b16 %s, %s offset:%d" % (W(dst, 2), v(vl + ((n % nslots) * ukb * 1024 + off) // 65536), ((n % nslots) * ukb * 1024 + off) % 65536))
    L.drain()


def hi_copies(A, vl, n=2):
    for k in range(1, n + 1):
        A("v_add_u32 %s, 0x%x, %s" % (v(vl + k), 65536 * k, v(vl)))


def bload(width, voff, srd_, off):
    op = "buffer_load_dword" if width == 1 else "buffer_load_dwordx%d" % width

    def f(reg):
        return ["s_mov_b32 s%d, 0x%x" % (S_T, off),
                "%s %s, %s, s[%d:%d], s%d offen nt" % (op, v(reg, width), v(voff), srd_, srd_ + 3, S_T)]
    return f


def smf_row(j):
    return 32 * (j // 4) + 8 * (j % 2) + 2 * ((j % 4) // 2)
```

```python
from common import *

WSR = "s[%d:%d]" % (SRD_WS, SRD_WS + 3)
AR_ = "s[%d:%d]" % (SRD_A, SRD_A + 3)
BR_ = "s[%d:%d]" % (SRD_B, SRD_B + 3)


def flag_lanes(A, vd, vt, sbase, ncu, per32=None):
    A("v_lshrrev_b32 %s, 2, v0" % v(vt))
    A("v_min_u32 %s, %d, %s" % (v(vt), ncu - 1, v(vt)))
    A("v_add_u32 %s, s%d, %s" % (v(vt), sbase, v(vt)))
    A("v_lshlrev_b32 %s, 7, %s" % (v(vt), v(vt)))
    A("v_and_b32 %s, 3, v0" % v(vd))
    A("v_lshl_add_u32 %s, %s, 2, %s" % (v(vd), v(vd), v(vt)))


def dma_block(A, vaddr, s_lds, s_glob, n, t0=S_T):
    out = []
    for k in range(n):
        grp = []
        if k % 4 == 0:
            grp.append("s_add_u32 s%d, s%d, %d" % (t0, s_lds, 1024 * k))
            grp.append("s_add_u32 s%d, s%d, %d" % (t0 + 1, s_glob, 1024 * k))
            grp.append("s_mov_b32 m0, s%d" % t0)
        grp.append("buffer_load_dwordx4 %s, %s, s%d offen offset:%d sc1 lds" % (v(vaddr), WSR, t0 + 1, 1024 * (k % 4)))
        out.append(grp)
    return out


def late_start(A, cfg, census, vtmp):
    A("s_waitcnt vmcnt(0)")
    census.early(A)
    census(A)
    if cfg.get("nolate"):
        return
    A("v_mov_b32 %s, %d" % (v(vtmp), ID_QKV * 128))
    A("s_mov_b32 s86, 1")
    poll_flags(A, vtmp, vtmp + 1, 86, "late")


def role_qkv(A, cfg, census):
    V_L16, V_FL, V_FX, V_DM, V_OT, V_OV, V_RD = 2, 3, 4, 5, 6, 7, 8
    ACC, FR, T = 16, 48, 96
    DEPTH = 4
    A("L_role_qkv:")
    A("s_sub_u32 s80, s%d, 64" % S_IDX)
    A("s_lshr_b32 s80, s80, 5")
    A("s_lshl_b32 s80, s80, 4")
    A("s_and_b32 s64, s%d, 15" % S_IDX)
    A("s_add_u32 s80, s80, s64")
    A("s_and_b32 s66, s%d, 1" % S_W)
    A("s_lshr_b32 s67, s%d, 1" % S_W)
    srd(A, SRD_A, P_WQ, 1024 * 4096 * 2)
    srd(A, SRD_B, P_WK, 1024 * 4096 * 2)
    srd(A, 4, P_WV, 1024 * 4096 * 2)
    A("v_lshrrev_b32 v20, 3, v0")
    A("s_lshl_b32 s64, s%d, 3" % S_W)
    A("v_add_u32 v20, s64, v20")
    A("v_lshlrev_b32 v20, 13, v20")
    A("v_bfe_u32 v21, v0, 4, 1")
    A("v_lshlrev_b32 v21, 2, v21")
    A("v_and_b32 v22, 7, v0")
    A("v_xor_b32 v21, v21, v22")
    A("v_lshl_add_u32 v20, v21, 4, v20")
    A("s_lshl_b32 s64, s80, 7")
    A("v_add_u32 v20, s64, v20")
    A("s_lshl_b32 s83, s%d, 10" % S_W)
    A("v_lshrrev_b32 v24, 4, v0")
    A("v_bfe_u32 v25, v0, 2, 2")
    A("v_lshl_add_u32 v24, v24, 3, v25")
    A("v_lshlrev_b32 v24, 7, v24")
    A("v_and_b32 v23, 3, v0")
    A("v_lshl_add_u32 v24, v23, 4, v24")
    A("v_bfe_u32 v25, v0, 3, 1")
    A("v_xor_b32 v26, s66, v25")
    A("v_lshl_add_u32 v32, v26, 6, v24")
    A("s_lshl_b32 s64, s67, 12")
    A("v_add_u32 v32, s64, v32")
    hi_copies(A, 32)
    A("v_xor_b32 v26, s67, v25")
    A("v_lshl_add_u32 v36, v26, 6, v24")
    A("s_lshl_b32 s64, s66, 3")
    A("s_add_u32 s64, s64, 8192")
    A("v_add_u32 v36, s64, v36")
    hi_copies(A, 36)
    flag_addr_own(A, V_FL, 0, S_IDX)
    A("v_lshlrev_b32 %s, 4, v0" % v(V_L16))
    A("s_lshl_b32 s81, s%d, 13" % S_W)
    A("v_add_u32 %s, s81, %s" % (v(V_DM), v(V_L16)))
    A("v_add_u32 v23, %d, v23" % ID_AUX)
    A("v_lshlrev_b32 v23, 7, v23")
    A("s_lshl_b32 s64, s%d, 2" % S_W)
    A("s_add_u32 s64, s64, 64")
    A("v_add_u32 %s, s64, v23" % v(V_FX))
    A("s_and_b32 s64, s80, 1")
    A("s_lshl_b32 s65, s64, 1")
    A("s_add_u32 s65, s65, s66")
    A("s_lshl_b32 s65, s65, 10")
    A("s_cmp_lt_u32 s%d, 2" % S_W)
    A("s_cselect_b32 s67, 16384, 0")
    A("s_add_u32 s65, s65, s67")
    A("v_add_u32 %s, s65, %s" % (v(V_OT), v(V_L16)))
    A("s_lshl_b32 s65, s64, 2")
    A("s_add_u32 s65, s65, s%d" % S_W)
    A("s_lshl_b32 s65, s65, 10")
    A("s_add_u32 s65, s65, 8192")
    A("v_add_u32 %s, s65, %s" % (v(V_OV), v(V_L16)))
    A("s_lshr_b32 s82, s80, 1")
    A("s_mul_i32 s82, s82, 24576")
    A("s_add_u32 s82, s82, 0x%x" % KVQ)

    def home(kk, t):
        n = 3 * kk + t
        return 256 + 4 * n if n < 64 else 128 + 4 * (n - 64)
    units = []
    for kk in range(32):
        units.append(dict(slabs=[(sr, 20, 32 * kk * 8192, 4096 * m) for m, sr in enumerate((SRD_A, SRD_B, 4))],
                          reads=[(home(kk, f) + 2 * hf, 32, 512 * hf + 8 * f) for f in range(2) for hf in range(2)] +
                                [(home(kk, 2) + 2 * hf, 36, 512 * hf) for hf in range(2)]))
    load_weights_tr(A, units, 12, 13, 83, early=census.early, shared=True, cfg=cfg)
    stamp(A, cfg, "pw")
    census(A)
    A("s_add_u32 s83, s82, 4096")
    A("s_barrier")

    def dma(sl, sg):
        return dma_block(A, V_DM, sl, sg, 8)
    A("s_mov_b32 s%d, 0" % S_STEP)
    A("s_mov_b32 s84, 0x%x" % XN)
    A("s_mov_b32 s85, s81")
    A("s_mov_b32 s86, 1")
    poll_flags(A, V_FX, T, 86, "fx0")
    A("s_add_u32 s87, s84, 32768")
    A("s_add_u32 s88, s85, 32768")
    for g in dma(85, 84) + dma(88, 87):
        for t in g:
            A(t)
    A("v_mov_b32 %s, %s" % (v(V_RD), v(V_L16)))
    A("v_xor_b32 %s, 0x1000, %s" % (v(V_FX), v(V_FX)))
    A("buffer_load_dword %s, %s, %s, 0 offen sc1" % (v(T + 12), v(V_FX), WSR))
    A("s_waitcnt vmcnt(0)")

    A("L_qkv_top:")
    A("s_waitcnt vmcnt(3)")
    A("s_barrier")
    stamp(A, cfg, "pa")
    L = Cnt(A, "lgkmcnt", 15)

    def rd(kk):
        for tt in range(2):
            L.issue(kk, "ds_read_b128 %s, %s offset:%d" % (v(FR + 8 * (kk % DEPTH) + 4 * tt, 4), v(V_RD), 32768 * tt + 1024 * kk))
    for kk in range(DEPTH - 1):
        rd(kk)
    A("s_add_u32 s84, s84, 0x10000")
    A("s_xor_b32 s85, s85, 0x10000")
    A("s_add_u32 s87, s84, 32768")
    A("s_add_u32 s88, s85, 32768")
    A("s_add_u32 s86, s%d, 3" % S_STEP)
    A("s_lshr_b32 s86, s86, 1")
    A("s_min_u32 s86, s86, 32")
    poll_flags(A, V_FX, T + 12, 86, "fx", preissued=3)
    A("v_xor_b32 %s, 0x1000, %s" % (v(V_FX), v(V_FX)))
    groups = dma(85, 84) + dma(88, 87)
    ndma = 0
    for kk in range(32):
        L.wait(kk)
        f = FR + 8 * (kk % DEPTH)
        n = 0
        for t in range(3):
            for tt in range(2):
                d = ACC + 8 * t + 4 * tt
                c = "0" if kk == 0 else v(d, 4)
                wv, xv = W(home(kk, t), 4), v(f + 4 * tt, 4)
                A("v_mfma_f32_16x16x32_bf16 %s, %s, %s, %s" % ((v(d, 4), wv, xv, c) if t < 2 else (v(d, 4), xv, wv, c)))
                n += 1
                if n == 1 and kk + DEPTH - 1 < 32:
                    rd(kk + DEPTH - 1)
                if n == 4 and groups:
                    for t_ in groups.pop(0):
                        A(t_)
                    ndma += 1
                if n == 4 and kk == 18:
                    A("s_waitcnt vmcnt(%d)" % ndma)
                    set_flag(A, V_FL, T + 13, S_STEP)
                if n == 4 and kk == 30:
                    A("buffer_load_dword %s, %s, %s, 0 offen sc1" % (v(T + 12), v(V_FX), WSR))
    assert not groups
    stamp(A, cfg, "pb")
    for tt in range(2):
        for c in range(4):
            b = ACC + 8 * (c // 2) + 4 * tt + 2 * (c % 2)
            A("v_cvt_pk_bf16_f32 %s, %s, %s" % (v(T + 4 * tt + c), v(b), v(b + 1)))
        A("buffer_store_dwordx4 %s, %s, %s, s%d offen sc1" % (v(T + 4 * tt, 4), v(V_OT), WSR, 82 + tt))
    for r in range(4):
        A("v_cvt_pk_bf16_f32 %s, %s, %s" % (v(T + 8 + r), v(ACC + 16 + 2 * r), v(ACC + 17 + 2 * r)))
    A("buffer_store_dwordx4 %s, %s, %s, s82 offen sc1" % (v(T + 8, 4), v(V_OV), WSR))
    stamp(A, cfg, "pc")
    stamp_flush(A, cfg, T + 14, 6)
    A("v_xor_b32 %s, 0x10000, %s" % (v(V_RD), v(V_RD)))
    A("s_add_u32 s82, s82, %d" % (32 * 24576))
    A("s_add_u32 s83, s83, %d" % (32 * 24576))
    A("s_add_u32 s%d, s%d, 1" % (S_STEP, S_STEP))
    A("s_cmp_gt_u32 s%d, 2" % S_STEP)
    A("s_cbranch_scc1 L_qkv_next")
    A("s_waitcnt vmcnt(0)")
    set_flag(A, V_FL, T + 13, S_STEP)
    A("L_qkv_next:")
    A("s_cmp_lt_u32 s%d, 64" % S_STEP)
    A("s_cbranch_scc1 L_qkv_top")
    A("s_waitcnt vmcnt(0)")
    set_flag(A, V_FL, T + 13, S_STEP)
    dbg_time(A, cfg, 16, [(78, 100)], 7, ID_QKV, 0)
    A("s_endpgm")


def role_proj(A, cfg, census, name):
    wo = name == "wo"
    NK = 32 if wo else 28
    V_L16, V_FL, V_FP, V_IN, V_RW, V_RR, V_OUT, V_L4, V_HF, V_RM = 2, 3, 4, 5, 6, 7, 8, 9, 10, 11
    ACC, FR, T, RES, PP, HOLD = 16, 64, 48, 52, 56, 192
    A("L_role_%s:" % name)
    A("s_bfe_u32 s80, s%d, 0x10005" % S_IDX)
    A("s_and_b32 s81, s%d, 15" % S_IDX)
    srd(A, SRD_A, P_WO if wo else P_WD, (4096 if wo else 3584) * 2048)
    A("s_lshl_b32 s82, s80, 2")
    A("s_add_u32 s82, s82, s%d" % S_W)
    A("v_lshrrev_b32 v20, 3, v0")
    A("v_lshlrev_b32 v20, 11, v20")
    A("v_and_b32 v21, 7, v0")
    A("v_lshl_add_u32 v20, v21, 4, v20")
    A("s_mul_i32 s64, s82, %d" % (NK * 16 * 2048))
    A("s_lshl_b32 s65, s81, 7")
    A("s_add_u32 s64, s64, s65")
    A("v_add_u32 v20, s64, v20")
    A("v_lshrrev_b32 v22, 5, v0")
    A("v_bfe_u32 v21, v0, 2, 2")
    A("v_lshlrev_b32 v21, 7, v21")
    A("v_lshl_add_u32 v21, v22, %d, v21" % (10 if wo else 9))
    A("v_bfe_u32 v23, v0, 4, 1")
    A("v_lshl_add_u32 v21, v23, 6, v21")
    A("v_and_b32 v23, 3, v0")
    A("v_lshl_add_u32 v21, v23, 4, v21")
    A("s_mul_i32 s83, s%d, 40960" % S_W)
    A("v_add_u32 v21, s83, v21")
    flag_addr_own(A, V_FL, 0, S_IDX)
    A("v_lshlrev_b32 %s, 4, v0" % v(V_L16))
    A("s_mul_i32 s64, s82, %d" % (NK * 1024))
    A("v_add_u32 %s, s64, %s" % (v(V_IN), v(V_L16)))
    A("s_lshl_b32 s64, s80, 5")
    A("s_mul_i32 s65, s%d, %d" % (S_W, 4 if wo else 7))
    A("s_add_u32 s64, s64, s65")
    if not wo:
        A("s_add_u32 s64, s64, %d" % ID_F1)
    flag_lanes(A, V_FP, 24, 64, 4 if wo else 7)
    A("v_and_b32 v23, 31, v0")
    A("v_lshlrev_b32 v24, 10, v22")
    A("v_lshl_add_u32 v24, v23, 4, v24")
    A("s_lshl_b32 s64, s%d, 13" % S_W)
    A("v_add_u32 %s, s64, v24" % v(V_RW))
    A("s_lshl_b32 s64, s%d, 11" % S_W)
    A("v_add_u32 %s, s64, v24" % v(V_RR))
    A("s_lshl_b32 s65, s81, 13")
    A("s_add_u32 s64, s64, s65")
    A("v_add_u32 %s, s64, v24" % v(V_OUT))
    A("s_lshr_b32 s64, s64, 10")
    A("v_add_u32 v25, s64, v22")
    A("v_lshlrev_b32 v26, 4, v23")
    A("v_lshl_add_u32 %s, v25, 9, v26" % v(V_HF))
    A("v_lshlrev_b32 v26, 11, v23")
    A("v_lshl_add_u32 %s, v25, 4, v26" % v(V_RM))
    A("s_lshr_b32 s88, s%d, 1" % S_W)
    A("s_xor_b32 s88, s88, s80")
    A("v_lshlrev_b32 %s, 2, v0" % v(V_L4))
    A("s_lshl_b32 s96, s81, 2")
    A("s_add_u32 s96, s96, s%d" % S_W)
    A("s_lshl_b32 s96, s96, 8")
    A("s_add_u32 s96, s96, 0x%x" % HS)
    srd(A, SRD_B, P_X if wo else P_OUT, 2048 * 2048)
    late_start(A, cfg, census, 30)
    units = []
    for ks in range(NK):
        units.append(dict(slabs=[(SRD_A, 20, (16 * ks + 8 * k) * 2048, 1024 * k) for k in range(2)],
                          reads=[(256 + 8 * ks + 4 * f + 2 * hf, 21, (512 if wo else 1024) * hf + 8 * f) for f in range(2) for hf in range(2)]))
    load_weights_tr(A, units, 2, cfg.get("lslots", 16), 83)
    A("s_mov_b32 s%d, 0" % S_STEP)
    A("s_mov_b32 s84, 0x%x" % (OX if wo else ACT))
    A("s_mov_b32 s92, 0")
    BLK = 0x40000 if wo else 224 * 1024

    def loads():
        for ks in range(NK):
            if ks % 4 == 0:
                A("s_add_u32 s64, s84, %d" % (1024 * ks))
            A("buffer_load_dwordx4 %s, %s, %s, s64 offen offset:%d sc1" % (v(FR + 4 * ks, 4), v(V_IN), WSR, 1024 * (ks % 4)))
        A("s_add_u32 s84, s84, %d" % BLK)

    pl = lambda so: ["buffer_load_dwordx4 %s, %s, %s, s%d offen offset:%d sc1" % (v(PP + 4 * f, 4), v(V_OUT), WSR, so, 512 * f) for f in range(2)]

    def finish():
        got = A.label("got")
        check_sent(A, range(PP, PP + 8), T + 2)
        A("s_cbranch_vccz %s" % got)
        poll_data(A, pl(95), range(PP, PP + 8), T + 2, "px")
        A(got + ":")
        A("s_lshl_b32 s64, s92, 16")
        for d in range(4):
            A("v_pk_add_f32 %s, %s, %s" % (v(HOLD + 2 * d, 2), v(HOLD + 2 * d, 2), v(PP + 2 * d, 2)))
            A("v_cvt_pk_bf16_f32 %s, %s, %s" % (v(PP + d), v(HOLD + 2 * d), v(HOLD + 2 * d + 1)))
        if wo:
            A("s_add_u32 s65, s64, 0x%x" % HF)
            A("buffer_store_dwordx4 %s, %s, %s, s65 offen sc1" % (v(PP, 4), v(V_HF), WSR))
            A("v_pk_mul_f32 %s, %s, %s" % (v(PP + 6, 2), v(HOLD, 2), v(HOLD, 2)))
            for d in range(1, 4):
                A("v_pk_fma_f32 %s, %s, %s, %s" % (v(PP + 6, 2), v(HOLD + 2 * d, 2), v(HOLD + 2 * d, 2), v(PP + 6, 2)))
                A("v_pk_add_f32 %s, %s, %s" % (v(HOLD, 2), v(HOLD, 2), v(HOLD + 2 * d, 2)))
            A("v_add_f32 %s, %s, %s" % (v(HOLD), v(HOLD), v(HOLD + 1)))
            A("v_add_f32 %s, %s, %s" % (v(HOLD + 1), v(PP + 6), v(PP + 7)))
            A("s_lshr_b32 s64, s64, 2")
            A("s_add_u32 s64, s64, s96")
            A("v_permlane32_swap_b32 %s, %s" % (v(HOLD), v(HOLD + 1)))
            A("v_add_f32 %s, %s, %s" % (v(HOLD), v(HOLD), v(HOLD + 1)))
            A("buffer_store_dword %s, %s, %s, s64 offen sc1" % (v(HOLD), v(V_L4), WSR))
        else:
            A("buffer_store_dwordx4 %s, %s, %s, s64 offen" % (v(PP, 4), v(V_RM), BR_))
        A("s_add_u32 s92, s92, 1")

    A("L_%s_wait:" % name)
    A("s_add_u32 s86, s%d, 1" % S_STEP)
    A("buffer_load_dword %s, %s, %s, 0 offen sc1" % (v(T), v(V_FP), WSR))
    A("s_waitcnt vmcnt(0)")
    if wo:
        set_flag(A, V_FL, T + 1, 92)
    A("s_cmp_eq_u32 s%d, 64" % S_STEP)
    A("s_cbranch_scc1 %s" % ("L_%s_end" % name if cfg.get("dst") else "L_end"))
    poll_flags(A, V_FP, T, 86, "fp", preissued=1)
    loads()
    A("L_%s_top:" % name)
    stamp(A, cfg, name + "a")
    A("s_lshl_b32 s64, s%d, 16" % S_STEP)
    if wo:
        A("buffer_load_dwordx4 %s, %s, %s, s64 offen" % (v(RES, 4), v(V_RM), BR_))
    else:
        A("s_add_u32 s64, s64, 0x%x" % HF)
        A("buffer_load_dwordx4 %s, %s, %s, s64 offen sc1" % (v(RES, 4), v(V_HF), WSR))
    A("buffer_load_dword %s, %s, %s, 0 offen sc1" % (v(T), v(V_FP), WSR))
    A("s_add_u32 s86, s%d, 2" % S_STEP)
    A("s_and_b32 s85, s%d, 3" % S_STEP)
    A("s_lshl_b32 s85, s85, 17")
    A("s_xor_b32 s91, s85, 0x40000")
    A("s_add_u32 s85, s85, 0x%x" % (RING_X + (0 if wo else 0x80000)))
    A("s_add_u32 s91, s91, 0x%x" % (RING_X + (0 if wo else 0x80000)))
    for ks in range(NK):
        A("s_waitcnt vmcnt(%d)" % (NK + 1 - ks))
        for f in range(2):
            d = v(ACC + 16 * f, 16)
            A("v_mfma_f32_32x32x16_bf16 %s, %s, %s, %s" % (d, a(8 * ks + 4 * f, 4), v(FR + 4 * ks, 4), "0" if ks == 0 else d))
    stamp(A, cfg, name + "b")
    A("s_waitcnt vmcnt(0)")
    if wo:
        set_flag(A, V_FL, T + 1, 92)
    A("v_cmp_gt_u32 vcc, s86, %s" % v(T))
    A("s_cmp_eq_u64 vcc, 0")
    A("s_cselect_b32 s87, 1, 0")
    nop, nop2 = A.label("np"), A.label("np2")
    A("s_cmp_lg_u32 s88, 0")
    A("s_cbranch_scc1 %s" % nop)
    A("s_cmp_eq_u32 s92, s%d" % S_STEP)
    A("s_cbranch_scc1 %s" % nop2)
    finish()
    A(nop2 + ":")
    A("s_cmp_eq_u32 s87, 0")
    A("s_cbranch_scc1 %s" % nop)
    loads()
    A(nop + ":")
    A("s_barrier")
    for f in range(2):
        for j in range(4):
            A("ds_write_b128 %s, %s offset:%d" % (v(V_RW), v(ACC + 16 * f + 4 * j, 4), 2048 * j + 512 * f))
    A("s_waitcnt lgkmcnt(0)")
    A("s_barrier")
    for f in range(2):
        for k in range(4):
            A("ds_read_b128 %s, %s offset:%d" % (v(ACC + 16 * f + 4 * k, 4), v(V_RR), 8192 * k + 512 * f))
    for f in range(2):
        b = ACC + 16 * f
        A("s_waitcnt lgkmcnt(%d)" % (4 * (1 - f)))
        for (x, y) in ((0, 4), (8, 12), (0, 8)):
            for r in (0, 2):
                A("v_pk_add_f32 %s, %s, %s" % (v(b + x + r, 2), v(b + x + r, 2), v(b + y + r, 2)))
    fin, join = A.label("fin"), A.label("join")
    A("s_cmp_eq_u32 s88, 0")
    A("s_cbranch_scc1 %s" % fin)
    for f in range(2):
        for r in range(4):
            A("v_min_u32 %s, s%d, %s" % (v(ACC + 16 * f + r), S_CLAMP, v(ACC + 16 * f + r)))
        A("buffer_store_dwordx4 %s, %s, %s, s85 offen offset:%d sc1" % (v(ACC + 16 * f, 4), v(V_OUT), WSR, 512 * f))
    for r in range(4):
        A("v_mov_b32 %s, -1" % v(PP + r))
    for f in range(2):
        A("buffer_store_dwordx4 %s, %s, %s, s91 offen offset:%d sc1" % (v(PP, 4), v(V_OUT), WSR, 512 * f))
    A("s_cmp_eq_u32 s87, 0")
    A("s_cbranch_scc1 %s" % join)
    loads()
    A("s_branch %s" % join)
    A(fin + ":")
    A("s_mov_b32 s95, s85")
    for x in pl(95):
        A(x)
    for d in range(4):
        b = ACC + 16 * (d // 2) + 2 * (d % 2)
        A("v_lshlrev_b32 %s, 16, %s" % (v(HOLD + 2 * d), v(RES + d)))
        A("v_and_b32 %s, 0xffff0000, %s" % (v(HOLD + 2 * d + 1), v(RES + d)))
        A("v_pk_add_f32 %s, %s, %s" % (v(HOLD + 2 * d, 2), v(HOLD + 2 * d, 2), v(b, 2)))
    A("s_cmp_lg_u32 s87, 0")
    A("s_cbranch_scc1 %s" % join)
    A("s_waitcnt vmcnt(0)")
    finish()
    A(join + ":")
    stamp(A, cfg, name + "c")
    stamp_flush(A, cfg, ACC + 8, 3)
    A("s_add_u32 s%d, s%d, 1" % (S_STEP, S_STEP))
    A("s_cmp_lg_u32 s87, 0")
    A("s_cbranch_scc1 L_%s_top" % name)
    A("s_branch L_%s_wait" % name)
    if cfg.get("dst"):
        A("L_%s_end:" % name)
        dbg_time(A, cfg, 16, [(78, 100)], 5 if wo else 6, ID_WO if wo else ID_F2, 0)
        A("s_endpgm")


def role_f1(A, cfg, census):
    V_L16, V_FL, V_FH, V_DM, V_SW, V_SR, V_RD = 2, 3, 4, 5, 6, 7, 8
    ACC, CS, FR, T, ST, SL = 16, 32, 48, 96, 120, 128
    DEPTH = 6
    L_ST = 131072
    A("L_role_f1:")
    A("s_bfe_u32 s80, s%d, 0x10005" % S_IDX)
    A("s_mul_i32 s80, s80, 28")
    A("s_and_b32 s64, s%d, 31" % S_IDX)
    A("s_add_u32 s80, s80, s64")
    srd(A, SRD_A, P_WG, 1024 * 7168)
    srd(A, SRD_B, P_WU, 1024 * 7168)
    A("s_lshl_b32 s82, s80, 2")
    A("s_add_u32 s82, s82, s%d" % S_W)
    A("v_lshrrev_b32 v20, 3, v0")
    A("s_lshl_b32 s64, s%d, 4" % S_W)
    A("v_add_u32 v20, s64, v20")
    A("v_mul_u32_u24 v20, 7168, v20")
    A("s_lshl_b32 s64, s80, 7")
    A("v_add_u32 v20, s64, v20")
    A("v_bfe_u32 v21, v0, 4, 1")
    A("v_lshlrev_b32 v21, 1, v21")
    A("v_and_b32 v22, 7, v0")
    A("v_xor_b32 v21, v21, v22")
    A("v_xor_b32 v22, 4, v21")
    A("v_lshl_add_u32 v22, v22, 4, v20")
    A("v_lshl_add_u32 v20, v21, 4, v20")
    A("s_lshl_b32 s83, s%d, 11" % S_W)
    A("v_lshrrev_b32 v21, 5, v0")
    A("v_bfe_u32 v23, v0, 2, 2")
    A("v_lshl_add_u32 v21, v21, 3, v23")
    A("v_lshlrev_b32 v21, 7, v21")
    A("v_bfe_u32 v24, v0, 4, 1")
    A("v_lshl_add_u32 v21, v24, 13, v21")
    A("v_and_b32 v25, 1, v0")
    A("v_lshl_add_u32 v21, v25, 3, v21")
    A("v_bfe_u32 v25, v0, 1, 1")
    A("s_lshl_b32 s64, s%d, 1" % S_W)
    A("v_add_u32 v25, s64, v25")
    A("v_and_b32 v23, 2, v23")
    A("v_lshl_add_u32 v23, v24, 2, v23")
    A("v_xor_b32 v25, v25, v23")
    A("v_lshl_add_u32 v21, v25, 4, v21")
    A("v_lshlrev_b32 %s, 4, v0" % v(V_L16))
    for i in range(4):
        A("s_xor_b32 s64, s%d, %d" % (S_W, i))
        A("s_lshl_b32 s65, s64, 11")
        A("v_add_u32 %s, s65, v21" % v(48 + 4 * i))
        hi_copies(A, 48 + 4 * i)
        A("s_lshl_b32 s65, s64, 10")
        A("v_add_u32 %s, s65, %s" % (v(V_RD + i), v(V_L16)))
    flag_addr_own(A, V_FL, 0, S_IDX)
    A("s_lshl_b32 s81, s%d, 14" % S_W)
    A("v_add_u32 %s, s81, %s" % (v(V_DM), v(V_L16)))
    A("v_bfe_u32 v23, v0, 1, 1")
    A("v_bfe_u32 v24, v0, 2, 2")
    A("v_lshl_add_u32 v24, v23, 5, v24")
    A("s_lshl_b32 s64, s%d, 2" % S_W)
    A("s_add_u32 s64, s64, %d" % ID_WO)
    A("v_add_u32 v24, s64, v24")
    A("v_lshlrev_b32 v24, 7, v24")
    A("v_and_b32 v23, 3, v0")
    A("v_lshl_add_u32 %s, v23, 2, v24" % v(V_FH))
    A("v_and_b32 v23, 31, v0")
    A("v_lshlrev_b32 v23, 2, v23")
    A("v_add_u32 %s, %d, v23" % (v(V_SR), L_ST))
    A("v_and_b32 v23, 15, v0")
    A("v_lshlrev_b32 v23, 4, v23")
    A("s_lshl_b32 s64, s%d, 8" % S_W)
    A("s_add_u32 s64, s64, %d" % L_ST)
    A("v_add_u32 %s, s64, v23" % v(V_SW))
    A("s_lshl_b32 s89, s%d, 12" % S_W)
    A("s_add_u32 s89, s89, 0x%x" % HS)
    A("s_lshl_b32 s82, s82, 10")
    A("s_add_u32 s82, s82, 0x%x" % ACT)
    late_start(A, cfg, census, 30)
    order = [16 * w_ + 4 * q + i for q in range(4) for w_ in range(4) for i in range(4)]
    units = []
    for u in range(16):
        n0 = order.index(4 * u)
        units.append(dict(slabs=[(sr, va, (64 * u + 8 * k) * 7168, 8192 * m + 1024 * k) for m, (sr, va) in enumerate(((SRD_A, 20), (SRD_B, 22))) for k in range(2)],
                          reads=[(256 + 4 * (n0 + i) + 2 * hf, 48 + 4 * i, 512 * hf) for i in range(4) for hf in range(2)]))
    load_weights_tr(A, units, 16, cfg.get("lslots", 8), 83, shared=True)
    A("s_mov_b32 s94, 0x3f803f80")
    for r in range(4):
        A("v_mov_b32 %s, s94" % v(FR + r))
    for n in range(64):
        A("v_mfma_f32_32x32x16_bf16 %s, %s, %s, %s" % (v(CS, 16), a(4 * n, 4), v(FR, 4), "0" if n == 0 else v(CS, 16)))
    A("s_barrier")
    A("s_mov_b32 s%d, 0" % S_STEP)
    A("s_mov_b32 s84, 0x%x" % HF)
    A("s_mov_b32 s85, s81")
    A("s_mov_b32 s92, 0xc0135761")
    A("s_mov_b32 s93, 0xbdd2d3e8")
    A("s_mov_b32 s95, 0x3a800000")

    def fetch_adv():
        A("s_add_u32 s84, s84, 0x10000")
        A("s_xor_b32 s85, s85, 0x10000")

    A("L_f1_wait:")
    A("s_add_u32 s86, s%d, 1" % S_STEP)
    A("buffer_load_dword %s, %s, %s, 0 offen sc1" % (v(T + 16), v(V_FH), WSR))
    A("s_waitcnt vmcnt(0)")
    set_flag(A, V_FL, T + 17, S_STEP)
    A("s_cmp_eq_u32 s%d, 64" % S_STEP)
    A("s_cbranch_scc1 L_end")
    poll_flags(A, V_FH, T + 16, 86, "fh", preissued=1)
    for g in dma_block(A, V_DM, 85, 84, 16):
        for t in g:
            A(t)
    fetch_adv()
    A("L_f1_top:")
    stamp(A, cfg, "ga")
    A("buffer_load_dword %s, %s, %s, 0 offen sc1" % (v(T + 16), v(V_FH), WSR))
    A("s_add_u32 s86, s%d, 2" % S_STEP)
    for k in range(4):
        A("buffer_load_dwordx4 %s, %s, %s, s89 offen offset:%d sc1" % (v(SL + 4 * k, 4), v(V_L16), WSR, 1024 * k))
    A("s_add_u32 s89, s89, 0x4000")
    L = Cnt(A, "lgkmcnt", 15)

    def rd(n):
        L.issue(n, "ds_read_b128 %s, %s offset:%d" % (v(FR + 4 * (n % DEPTH), 4), v(V_RD + n % 4), 1024 * order[n & ~3]))
    issued = 0
    stat = []
    for (x, y) in ((0, 4), (8, 12), (0, 8)):
        for r in (0, 2):
            stat.append("v_pk_add_f32 %s, %s, %s" % (v(SL + x + r, 2), v(SL + x + r, 2), v(SL + y + r, 2)))
    for sw in ("v_permlane16_swap_b32", "v_permlane32_swap_b32"):
        stat += ["v_mov_b32 %s, %s" % (v(SL + 4 + r), v(SL + r)) for r in range(4)]
        stat += ["%s %s, %s" % (sw, v(SL + r), v(SL + 4 + r)) for r in range(4)]
        stat += ["v_pk_add_f32 %s, %s, %s" % (v(SL + r, 2), v(SL + r, 2), v(SL + 4 + r, 2)) for r in (0, 2)]
    stat.append(lambda: L.issue("st", "ds_write_b128 %s, %s" % (v(V_SW), v(SL, 4))))
    stat.append("v_add_u32 %s, 128, %s" % (v(V_SR + 5), v(V_SR)))
    for n in range(64):
        while issued < 64 and issued < n + DEPTH - 2 + (2 if n == 0 else 0):
            if issued % 16 == 0:
                if issued > n + 2:
                    break
                A("s_waitcnt vmcnt(%d)" % (17 - 4 * (issued // 16)))
                A("s_barrier")
            rd(issued)
            issued += 1
        L.wait(n)
        d = v(ACC, 16)
        fr = FR + 4 * (n % DEPTH)
        A("v_mfma_f32_32x32x16_bf16 %s, %s, %s, %s" % (d, a(4 * n, 4), v(fr, 4), "0" if n == 0 else d))
        if n > 48:
            for _ in range(3):
                if stat:
                    x = stat.pop(0)
                    x() if callable(x) else A(x)
        if n == 47:
            A("s_waitcnt vmcnt(0)")
            set_flag(A, V_FL, T + 17, S_STEP)
            A("v_cmp_gt_u32 vcc, s86, %s" % v(T + 16))
            A("s_mov_b32 s87, 0")
            nop = A.label("np")
            A("s_cbranch_vccnz %s" % nop)
            for g in dma_block(A, V_DM, 85, 84, 16):
                for t in g:
                    A(t)
            fetch_adv()
            A("s_mov_b32 s87, 1")
            A(nop + ":")
        if n == 62:
            assert not stat
            L.wait("st")
            A("s_barrier")
            for k in range(2):
                L.issue("sr", "ds_read2st64_b32 %s, %s offset0:%d offset1:%d" % (v(T + 2 * k, 2), v(V_SR), 2 * k, 2 * k + 1))
                L.issue("sr", "ds_read2st64_b32 %s, %s offset0:%d offset1:%d" % (v(T + 4 + 2 * k, 2), v(V_SR + 5), 2 * k, 2 * k + 1))
    stamp(A, cfg, "gb")
    for i in range(4):
        A("v_xor_b32 %s, 0x10000, %s" % (v(V_RD + i), v(V_RD + i)))
    A("v_xor_b32 %s, 1024, %s" % (v(V_SW), v(V_SW)))
    A("v_xor_b32 %s, 1024, %s" % (v(V_SR), v(V_SR)))
    A("v_mov_b32 %s, s92" % v(T + 8))
    A("s_waitcnt lgkmcnt(0)")
    A("v_pk_add_f32 %s, %s, %s" % (v(T, 2), v(T, 2), v(T + 2, 2)))
    A("v_pk_add_f32 %s, %s, %s" % (v(T + 4, 2), v(T + 4, 2), v(T + 6, 2)))
    A("v_add_f32 %s, %s, %s" % (v(T), v(T), v(T + 1)))
    A("v_add_f32 %s, %s, %s" % (v(T + 1), v(T + 4), v(T + 5)))
    A("v_mul_f32 %s, s95, %s" % (v(ST), v(T)))
    A("v_mul_f32 %s, s95, %s" % (v(T + 1), v(T + 1)))
    A("v_fma_f32 %s, -%s, %s, %s" % (v(T + 1), v(ST), v(ST), v(T + 1)))
    A("v_max_f32 %s, 0, %s" % (v(T + 1), v(T + 1)))
    A("v_add_f32 %s, 0x3727c5ac, %s" % (v(T + 1), v(T + 1)))
    A("v_rsq_f32 %s, %s" % (v(ST + 2), v(T + 1)))
    for i in range(0, 16, 2):
        A("v_pk_fma_f32 %s, %s, %s, %s op_sel_hi:[1,0,1] neg_lo:[0,1,0] neg_hi:[0,1,0]" % (v(ACC + i, 2), v(CS + i, 2), v(ST, 2), v(ACC + i, 2)))
    for i in range(0, 16, 2):
        A("v_pk_mul_f32 %s, %s, %s op_sel_hi:[1,0]" % (v(ACC + i, 2), v(ACC + i, 2), v(ST + 2, 2)))
    for i in range(0, 8, 2):
        A("v_pk_mul_f32 %s, %s, %s" % (v(T + i, 2), v(ACC + i, 2), v(ACC + i, 2)))
    for i in range(8):
        A("v_fma_f32 %s, %s, s93, %s" % (v(T + i), v(T + i), v(T + 8)))
    for i in range(0, 8, 2):
        A("v_pk_mul_f32 %s, %s, %s" % (v(T + i, 2), v(T + i, 2), v(ACC + i, 2)))
    for i in range(8):
        A("v_exp_f32 %s, %s" % (v(T + i), v(T + i)))
    for i in range(8):
        A("v_add_f32 %s, 1.0, %s" % (v(T + i), v(T + i)))
    for i in range(8):
        A("v_rcp_f32 %s, %s" % (v(T + i), v(T + i)))
    for i in range(0, 8, 2):
        A("v_pk_mul_f32 %s, %s, %s" % (v(T + i, 2), v(T + i, 2), v(ACC + i, 2)))
    for i in range(0, 8, 2):
        A("v_pk_mul_f32 %s, %s, %s" % (v(T + i, 2), v(T + i, 2), v(ACC + 8 + i, 2)))
    for i in range(4):
        A("v_cvt_pk_bf16_f32 %s, %s, %s" % (v(T + 12 + i), v(T + 2 * i), v(T + 2 * i + 1)))
    A("buffer_store_dwordx4 %s, %s, %s, s82 offen sc1" % (v(T + 12, 4), v(V_L16), WSR))
    stamp(A, cfg, "gc")
    stamp_flush(A, cfg, T + 18, 3)
    A("s_add_u32 s82, s82, %d" % (224 * 1024))
    A("s_add_u32 s%d, s%d, 1" % (S_STEP, S_STEP))
    A("s_cmp_lg_u32 s87, 0")
    A("s_cbranch_scc1 L_f1_top")
    A("s_branch L_f1_wait")


def role_aux(A, cfg, census):
    V_FL, V_X, V_XN, V_P, V_HN, V_FP, V_ST, V_SR = 2, 3, 4, 5, 6, 7, 8, 9
    XR, PA, PB, F, T, OUT = 160, 32, 64, 96, 128, 144
    A("L_role_aux:")
    A("s_bfe_u32 s80, s%d, 0x10005" % S_IDX)
    A("s_lshl_b32 s80, s80, 2")
    A("s_and_b32 s81, s%d, 3" % S_IDX)
    A("s_add_u32 s80, s80, s81")
    srd(A, SRD_A, P_X, 2048 * 2048)
    flag_addr_own(A, V_FL, 0, S_IDX)
    A("v_and_b32 v20, 7, v0")
    A("v_lshrrev_b32 v21, 3, v0")
    A("s_lshl_b32 s64, s%d, 5" % S_W)
    A("v_add_u32 v22, s64, v21")
    A("v_lshlrev_b32 v23, 11, v20")
    A("v_lshl_add_u32 %s, v22, 4, v23" % v(V_X))
    A("v_lshlrev_b32 v23, 4, v20")
    A("v_lshl_add_u32 %s, v22, 8, v23" % v(V_XN))
    A("v_lshlrev_b32 %s, 5, v20" % v(V_SR))
    A("s_lshl_b32 s64, s%d, 3" % S_W)
    A("v_add_u32 %s, s64, %s" % (v(V_ST), v(V_SR)))
    A("s_mov_b32 s90, 0xffff0000")
    A("s_mov_b32 s91, 0x3b800000")
    A("s_mov_b32 s92, 0x3a800000")
    A("s_mov_b32 s93, 0x3727c5ac")
    A("s_mov_b32 s94, 0x43800000")

    def xsum(r):
        A("v_add_f32_dpp %s, %s, %s row_ror:8 row_mask:0xf bank_mask:0xf" % (v(r), v(r), v(r)))
        for sw in ("v_permlane16_swap_b32", "v_permlane32_swap_b32"):
            A("v_mov_b32 %s, %s" % (v(r + 1), v(r)))
            A("%s %s, %s" % (sw, v(r), v(r + 1)))
            A("v_add_f32 %s, %s, %s" % (v(r), v(r), v(r + 1)))

    def tree(dst, sq):
        for k in range(4):
            if sq:
                A("v_mul_f32 %s, %s, %s" % (v(dst + k), v(F + k), v(F + k)))
            else:
                A("v_add_f32 %s, %s, %s" % (v(dst + k), v(F + k), v(F + 4 + k)))
        for i in range(4 if sq else 8, 32):
            if sq:
                A("v_fmac_f32 %s, %s, %s" % (v(dst + i % 4), v(F + i), v(F + i)))
            else:
                A("v_add_f32 %s, %s, %s" % (v(dst + i % 4), v(dst + i % 4), v(F + i)))
        A("v_add_f32 %s, %s, %s" % (v(dst), v(dst), v(dst + 1)))
        A("v_add_f32 %s, %s, %s" % (v(dst + 2), v(dst + 2), v(dst + 3)))
        A("v_add_f32 %s, %s, %s" % (v(dst), v(dst), v(dst + 2)))

    def unpack(src):
        for d in range(16):
            A("v_lshlrev_b32 %s, 16, %s" % (v(F + 2 * d), v(src + d)))
            A("v_and_b32 %s, s90, %s" % (v(F + 2 * d + 1), v(src + d)))

    def layernorm():
        tree(T, False)
        xsum(T)
        A("v_mul_f32 %s, s91, %s" % (v(T + 4), v(T)))
        for i in range(32):
            A("v_sub_f32 %s, %s, %s" % (v(F + i), v(F + i), v(T + 4)))
        tree(T, True)
        xsum(T)
        A("v_mov_b32 %s, %s" % (v(T + 5), v(T)))
        A("ds_write_b64 %s, %s" % (v(V_ST), v(T + 4, 2)))
        A("s_waitcnt lgkmcnt(0)")
        A("s_barrier")
        A("ds_read_b128 %s, %s" % (v(T + 8, 4), v(V_SR)))
        A("ds_read_b128 %s, %s offset:16" % (v(T + 12, 4), v(V_SR)))
        A("v_xor_b32 %s, 256, %s" % (v(V_ST), v(V_ST)))
        A("v_xor_b32 %s, 256, %s" % (v(V_SR), v(V_SR)))
        A("s_waitcnt lgkmcnt(0)")
        A("v_add_f32 %s, %s, %s" % (v(T), v(T + 8), v(T + 10)))
        A("v_add_f32 %s, %s, %s" % (v(T + 1), v(T + 12), v(T + 14)))
        A("v_add_f32 %s, %s, %s" % (v(T), v(T), v(T + 1)))
        A("v_mul_f32 %s, 0x3e800000, %s" % (v(T), v(T)))
        A("v_add_f32 %s, %s, %s" % (v(T + 1), v(T + 9), v(T + 11)))
        A("v_add_f32 %s, %s, %s" % (v(T + 2), v(T + 13), v(T + 15)))
        A("v_add_f32 %s, %s, %s" % (v(T + 1), v(T + 1), v(T + 2)))
        A("v_mov_b32 %s, 0" % v(T + 2))
        for k in range(4):
            A("v_sub_f32 %s, %s, %s" % (v(T + 3), v(T + 8 + 2 * k), v(T)))
            A("v_fmac_f32 %s, %s, %s" % (v(T + 2), v(T + 3), v(T + 3)))
        A("v_fma_f32 %s, %s, s94, %s" % (v(T + 1), v(T + 2), v(T + 1)))
        A("v_mov_b32 %s, s93" % v(T + 2))
        A("v_fma_f32 %s, %s, s92, %s" % (v(T + 1), v(T + 1), v(T + 2)))
        A("v_rsq_f32 %s, %s" % (v(T + 1), v(T + 1)))
        A("v_sub_f32 %s, %s, %s" % (v(T + 4), v(T + 4), v(T)))
        A("v_mul_f32 %s, %s, %s" % (v(T + 4), v(T + 4), v(T + 1)))
        for d in range(16):
            for e in range(2):
                A("v_fma_f32 %s, %s, %s, %s" % (v(F + 2 * d + e), v(F + 2 * d + e), v(T + 1), v(T + 4)))
            A("v_cvt_pk_bf16_f32 %s, %s, %s" % (v(OUT + d), v(F + 2 * d), v(F + 2 * d + 1)))

    def xload(srd_, so, sc):
        for j in range(4):
            A("buffer_load_dwordx4 %s, %s, %s, s%d offen offset:%d%s" % (v(XR + 4 * j, 4), v(V_X), srd_, so, 128 * j, sc))

    A("s_lshl_b32 s84, s80, 14")
    A("s_mov_b32 s%d, 0" % S_STEP)
    xload(AR_, 84, "")
    A("s_waitcnt vmcnt(4)")
    census.early(A)
    census(A)
    A("s_waitcnt vmcnt(0)")
    A("L_ln1_top:")
    A("s_waitcnt vmcnt(4)")
    unpack(XR)
    A("s_lshr_b32 s64, s84, 16")
    A("s_lshl_b32 s64, s64, 16")
    A("s_bfe_u32 s65, s84, 0x1000f")
    A("s_lshl_b32 s65, s65, 15")
    A("s_add_u32 s64, s64, s65")
    A("s_bfe_u32 s65, s84, 0x1000e")
    A("s_lshl_b32 s65, s65, 7")
    A("s_add_u32 s64, s64, s65")
    A("s_add_u32 s85, s64, 0x%x" % XN)
    A("s_add_u32 s86, s85, 4096")
    A("s_add_u32 s84, s84, 0x20000")
    xload(AR_, 84, "")
    layernorm()
    A("s_waitcnt vmcnt(4)")
    A("v_mov_b32 %s, s%d" % (v(T), S_STEP))
    A("buffer_store_dword %s, %s, %s, 0 offen offset:64 sc1" % (v(T), v(V_FL), WSR))
    A("s_waitcnt vmcnt(1)")
    for j in range(4):
        A("buffer_store_dwordx4 %s, %s, %s, s%d offen offset:%d sc1" % (v(OUT + 4 * j, 4), v(V_XN), WSR, 85 + j // 2, 2048 * (j % 2)))
    A("s_add_u32 s%d, s%d, 1" % (S_STEP, S_STEP))
    A("s_cmp_lt_u32 s%d, 32" % S_STEP)
    A("s_cbranch_scc1 L_ln1_top")
    A("s_waitcnt vmcnt(0)")
    A("v_mov_b32 %s, s%d" % (v(T), S_STEP))
    A("buffer_store_dword %s, %s, %s, 0 offen offset:64 sc1" % (v(T), v(V_FL), WSR))

    A("s_endpgm")


ROLES = dict(qkv=role_qkv, f1=role_f1, aux=role_aux,
             wo=lambda A, cfg, census: role_proj(A, cfg, census, "wo"),
             f2=lambda A, cfg, census: role_proj(A, cfg, census, "f2"))
```

```python
import sys
from common import *
import chain
try:
    import stream
except ImportError:
    stream = None

WSR = "s[%d:%d]" % (SRD_WS, SRD_WS + 3)
DBR = "s[%d:%d]" % (SRD_DBG, SRD_DBG + 3)
TICK_LANES = [0, 16, 32, 36, 40, 44, 48, 52]
V_ONE, V_INI = 28, 29
L_TICK = 163832


INIT_LANES = [12, 28, 46, 60]


def make_census(cfg):
    def early(A):
        skip = A.label("ce")
        A("s_barrier")
        A("s_or_b32 s64, s%d, s%d" % (S_CENS, S_W))
        A("s_cbranch_scc1 %s" % skip)
        A("s_mov_b64 exec, 1")
        A("buffer_atomic_add v%d, v%d, %s, 0 offen" % (V_ONE, V_INI, DBR))
        A("s_mov_b64 exec, -1")
        A(skip + ":")

    def census(A):
        done, top = A.label("cd"), A.label("ct")
        A("s_cmp_lg_u32 s%d, 0" % S_CENS)
        A("s_cbranch_scc1 %s" % done)
        A("v_mbcnt_lo_u32_b32 v17, -1, 0")
        A("v_mbcnt_hi_u32_b32 v17, -1, v17")
        A("v_lshlrev_b32 v17, 2, v17")
        mi = sum(1 << l for l in INIT_LANES)
        A(top + ":")
        A("buffer_load_dword v18, v17, %s, 0 offen sc1" % DBR)
        A("s_mov_b32 s64, 0x%x" % (mi & 0xffffffff))
        A("s_mov_b32 s65, 0x%x" % (mi >> 32))
        A("s_waitcnt vmcnt(0)")
        A("v_cmp_ne_u32 vcc, 64, v18")
        A("s_and_b64 s[64:65], s[64:65], vcc")
        ok = A.label("co")
        A("s_cbranch_scc0 %s" % ok)
        spin(A, top)
        A(ok + ":")
        if not cfg.get("force_slow"):
            m = sum(1 << l for l in TICK_LANES)
            A("v_cmp_ne_u32 vcc, 32, v18")
            A("s_mov_b32 s64, 0x%x" % (m & 0xffffffff))
            A("s_mov_b32 s65, 0x%x" % (m >> 32))
            A("s_and_b64 s[64:65], s[64:65], vcc")
            A("s_cbranch_scc1 L_recensus")
        A(done + ":")
    census.early = early
    return census


def prologue(A, cfg, census):
    A("s_cmp_ge_u32 s2, 256")
    A("s_cbranch_scc1 L_end")
    if cfg.get("dst"):
        A("s_memrealtime s[100:101]")
    A("s_load_dwordx16 s[8:23], s[0:1], 0")
    A("s_load_dwordx8 s[24:31], s[0:1], 64")
    A("s_load_dwordx4 s[32:35], s[0:1], 96")
    if cfg.get("cp"):
        A("s_getpc_b64 s[66:67]")
        A("L_pc:")
        A("s_lshr_b32 s64, s2, 3")
        A("s_lshl_b32 s64, s64, 8")
        A("v_add_u32 v30, s64, v0")
        A("v_lshlrev_b32 v30, 4, v30")
        A("v_min_u32 v30, L_last-L_pc-16, v30")
        A("global_load_dwordx4 v[248:251], v30, s[66:67]")
    A("s_getreg_b32 s%d, hwreg(HW_REG_XCC_ID)" % S_XCC)
    A("v_lshrrev_b32 v1, 6, v0")
    A("s_and_b32 s%d, s%d, 7" % (S_XCC, S_XCC))
    A("v_readfirstlane_b32 s%d, v1" % S_W)
    A("s_mov_b32 s%d, 0x05040100" % S_SELLO)
    A("s_mov_b32 s%d, 0x07060302" % S_SELHI)
    A("s_mov_b32 s%d, -2" % S_CLAMP)
    A("s_mov_b32 s%d, 0" % S_SPIN)
    A("s_mov_b32 s%d, 0" % S_CENS)
    A("s_mov_b32 s%d, %d" % (S_SLOW, 1 if cfg.get("force_slow") else 0))
    A("s_mov_b32 s%d, 0" % S_STEP)
    A("s_lshl_b32 s64, s%d, 6" % S_XCC)
    A("s_lshl_b32 s65, s%d, 4" % S_XCC)
    A("s_add_u32 s65, s65, 96")
    A("s_cmp_lt_u32 s%d, 2" % S_XCC)
    A("s_cselect_b32 s64, s64, s65")
    A("v_mov_b32 v3, s64")
    A("v_mov_b32 v2, 1")
    A("s_mul_i32 s64, s2, 7168")
    A("s_add_u32 s64, s64, 0x%x" % RING_P)
    A("v_lshl_add_u32 v11, v0, 4, s64")
    A("v_add_u32 v8, 4096, v11")
    for r in range(4):
        A("v_mov_b32 v%d, -1" % (12 + r))
    A("s_lshl_b32 s65, s2, 7")
    A("s_sub_u32 s65, s65, %d" % (192 * 16))
    A("v_lshl_add_u32 v9, v0, 4, s65")
    A("v_mov_b32 v10, 0x%x" % OOB)
    A("v_cmp_gt_u32 vcc, 200, v0")
    A("v_cndmask_b32 v9, v10, v9, vcc")
    A("v_cmp_gt_u32 vcc, 192, v0")
    A("v_cndmask_b32 v8, v9, v8, vcc")
    for r in range(4):
        A("v_cndmask_b32 v%d, 0, -1, vcc" % (4 + r))
    A("s_waitcnt lgkmcnt(0)")
    srd(A, SRD_WS, P_WS, WS_BYTES)
    srd(A, SRD_DBG, P_DBG, 256)
    if cfg.get("touch"):
        A("s_cmp_lg_u32 s%d, 1" % S_W)
        A("s_cbranch_scc1 L_notouch")
        A("s_mov_b64 exec, 15")
        A("v_and_b32 v30, 3, v0")
        A("v_lshlrev_b32 v30, 21, v30")
        A("v_and_b32 v31, 0x200000, v30")
        for k, ptr in enumerate((P_WQ, P_WK, P_WV, P_WO, P_WG, P_WU, P_WD)):
            A("global_load_dword v%d, v30, s[%d:%d]" % (240 + k, ptr, ptr + 1))
        A("global_load_dword v247, v31, s[%d:%d]" % (P_X, P_X + 1))
        A("s_mov_b64 exec, -1")
        A("L_notouch:")
    A("s_cmp_lg_u32 s%d, 0" % S_W)
    A("s_cbranch_scc1 L_notick")
    A("s_mov_b64 exec, 1")
    A("buffer_atomic_add v2, v3, %s, 0 offen sc0" % DBR)
    A("s_mov_b64 exec, -1")
    A("L_notick:")
    A("buffer_store_dwordx4 v[4:7], v8, %s, 0 offen sc1" % WSR)
    A("buffer_store_dwordx4 v[12:15], v11, %s, 0 offen sc1" % WSR)
    A("v_mov_b32 v3, 0x%x" % L_TICK)
    A("s_and_b32 s64, s2, 3")
    A("s_lshl_b32 s65, s64, 6")
    A("s_add_u32 s65, s65, 48")
    A("s_cmp_eq_u32 s64, 2")
    A("s_cselect_b32 s65, 184, s65")
    A("v_mov_b32 v%d, s65" % V_INI)
    A("v_mov_b32 v%d, 1" % V_ONE)
    A("s_cmp_lg_u32 s%d, 0" % S_W)
    A("s_cbranch_scc1 L_notick2")
    A("s_waitcnt vmcnt(2)")
    A("s_mov_b64 exec, 1")
    A("ds_write_b32 v3, v2")
    A("s_mov_b64 exec, -1")
    A("s_waitcnt lgkmcnt(0)")
    A("L_notick2:")
    A("s_barrier")
    A("ds_read_b32 v2, v3")
    A("s_waitcnt lgkmcnt(0)")
    A("v_readfirstlane_b32 s%d, v2" % S_TICK)
    if cfg.get("force_slow"):
        A("s_mov_b32 s%d, s2" % S_IDX)
        A("s_branch L_dispatch")
    else:
        A("s_lshl_b32 s%d, s%d, 5" % (S_IDX, S_XCC))
        A("s_add_u32 s%d, s%d, s%d" % (S_IDX, S_IDX, S_TICK))
        A("s_cmp_lt_u32 s%d, 32" % S_TICK)
        A("s_cbranch_scc1 L_dispatch")
        A("s_waitcnt vmcnt(0)")
        census.early(A)
        census(A)
        A("L_recensus:")
        A("s_mov_b32 s%d, s%d" % (S_IDX, S_TICK))
        for x in range(7):
            A("v_readlane_b32 s64, v18, %d" % TICK_LANES[x])
            A("s_cmp_gt_u32 s%d, %d" % (S_XCC, x))
            A("s_cselect_b32 s64, s64, 0")
            A("s_add_u32 s%d, s%d, s64" % (S_IDX, S_IDX))
        A("s_mov_b32 s%d, 1" % S_SLOW)
        A("s_mov_b32 s%d, 1" % S_CENS)
        A("s_waitcnt vmcnt(0) lgkmcnt(0)")
        A("s_barrier")
    A("L_dispatch:")
    A("v_mbcnt_lo_u32_b32 v0, -1, 0")
    A("v_mbcnt_hi_u32_b32 v0, -1, v0")
    c2 = dict(stamps=1) if cfg.get("pst") and not cfg.get("dst") else cfg
    stamp(A, c2, 0)
    stamp_flush(A, c2, 2, 1, 7)
    on = cfg["roles"]
    tgt = lambda r: "L_role_" + r if r in on else "L_role_off"
    A("s_cmp_ge_u32 s%d, 64" % S_IDX)
    A("s_cbranch_scc1 L_disp2")
    A("s_bitcmp1_b32 s%d, 4" % S_IDX)
    A("s_cbranch_scc1 %s" % tgt("vo"))
    A("s_branch %s" % tgt("qk"))
    A("L_disp2:")
    A("s_and_b32 s64, s%d, 31" % S_IDX)
    A("s_cmp_ge_u32 s%d, 192" % S_IDX)
    A("s_cbranch_scc1 L_disp3")
    A("s_cmp_ge_u32 s64, 16")
    A("s_cbranch_scc1 %s" % tgt("qkv"))
    A("s_cmp_lt_u32 s%d, 128" % S_IDX)
    A("s_cbranch_scc1 %s" % tgt("wo"))
    A("s_branch %s" % tgt("f2"))
    A("L_disp3:")
    A("s_cmp_lt_u32 s64, 28")
    A("s_cbranch_scc1 %s" % tgt("f1"))
    A("s_branch %s" % tgt("aux"))


def role_off(A, census):
    A("L_role_off:")
    A("s_waitcnt vmcnt(0)")
    census.early(A)
    census(A)
    flag_addr_own(A, 2, 0, S_IDX)
    A("s_mov_b32 s70, 64")
    set_flag(A, 2, 3, 70)
    A("buffer_store_dword v3, v2, %s, 0 offen offset:64 sc1" % WSR)
    A("s_endpgm")


def generate(cfg):
    A = Asm()
    census = make_census(cfg)
    prologue(A, cfg, census)
    A("L_giveup:")
    if cfg.get("debug"):
        A("v_mov_b32 v2, 1")
        A("v_mov_b32 v3, 244")
        A("s_mov_b64 exec, 1")
        A("buffer_atomic_add v2, v3, %s, 0 offen" % DBR)
    A("L_end:")
    A("s_endpgm")
    allroles = dict(qk=chain.role_qk, vo=chain.role_vo)
    if stream:
        allroles.update(stream.ROLES)
    for r in cfg["roles"]:
        allroles[r](A, cfg, census)
    if len(cfg["roles"]) < 7:
        role_off(A, census)
    A("L_last:")
    A("s_endpgm")
    n = A.fix_hazards()
    ref = open("cdna_kernels/%s.s.ref" % NAME).read().split("\n")
    head = [l for l in ref if l.startswith(";") and "@launch" not in l and "Override" not in l and "grid=ceil" not in l]
    k = NAME + "_kernel"
    out = "\n".join(head) + "\n; @launch grid=(256,1,1) block=(256,1,1) lds=163840\n"
    out += '.amdgcn_target "amdgcn-amd-amdhsa--gfx950"\n.text\n.globl %s\n.p2align 8\n.type %s,@function\n%s:\n' % (k, k, k)
    out += A.text()
    out += '''.section .rodata,"a"
.p2align 6
.amdhsa_kernel %s
  .amdhsa_next_free_vgpr 512
  .amdhsa_next_free_sgpr 102
  .amdhsa_accum_offset 256
  .amdhsa_group_segment_fixed_size 0
  .amdhsa_kernarg_size 112
  .amdhsa_user_sgpr_count 2
  .amdhsa_user_sgpr_kernarg_segment_ptr 1
  .amdhsa_system_sgpr_workgroup_id_x 1
  .amdhsa_float_denorm_mode_32 3
.end_amdhsa_kernel
''' % k
    return out, n


if __name__ == "__main__":
    cfg = dict(roles=["qk", "vo", "wo", "f2", "qkv", "f1", "aux"])
    for kv in sys.argv[2:]:
        k_, v_ = kv.split("=")
        cfg[k_] = v_.split(",") if k_ in ("roles", "sp") else int(v_)
    text, n = generate(cfg)
    open(sys.argv[1], "w").write(text)
    print("wrote %s: %d bytes, %d lines, %d nops inserted" % (sys.argv[1], len(text), text.count("\n"), n))
```

```python
from common import *
from common import miss as count

WSR = "s[%d:%d]" % (SRD_WS, SRD_WS + 3)
S_HI16 = S_R + 18
S_SCALE = S_R + 19
S_PM = 2
LU, RR, ACC, AR = 16, 48, 64, 80


def smf(A, d, a_, b, idx):
    A("v_smfmac_f32_16x16x64_bf16 %s, %s, %s, %s" % (v(d, 4), v(a_, 4), b, v(idx)))


def chain_setup(A):
    A("s_lshr_b32 s80, s%d, 5" % S_IDX)
    A("s_and_b32 s81, s%d, 15" % S_IDX)
    A("s_lshl_b32 s82, s80, 4")
    A("s_add_u32 s82, s82, s81")
    A("s_mov_b32 s%d, 0xffff0000" % S_HI16)
    A("v_and_b32 v1, 63, v0")
    A("s_mov_b32 s%d, 0x10001" % S_PM)
    A("s_mov_b32 s%d, 0x10001" % (S_PM + 1))


def smf_lane_rows(A, vd, vt, sh):
    A("v_lshrrev_b32 %s, 5, v1" % v(vd))
    A("v_lshlrev_b32 %s, %d, %s" % (v(vd), sh, v(vd)))
    A("v_bfe_u32 %s, v1, 4, 1" % v(vt))
    A("v_lshl_add_u32 %s, %s, 2, %s" % (v(vd), v(vt), v(vd)))


ORDER = [0, 4, 8, 12, 1, 5, 9, 13, 2, 6, 10, 14, 3, 7, 11, 15]
L_ID = 161024


def mem_row(ks, j):
    i = ks % 4
    return 256 * (ks // 4) + 32 * (i % 2) + 8 * (i // 2) + 128 * (j // 4) + 16 * (j % 2) + 2 * ((j % 4) // 2)


def gather_addr(A, vd, shw, shg, shh):
    A("v_lshrrev_b32 v21, 4, v1")
    A("v_lshlrev_b32 v21, %d, v21" % shg)
    A("v_bfe_u32 v23, v1, 3, 1")
    A("v_lshl_add_u32 v21, v23, %d, v21" % shh)
    A("v_and_b32 v23, 7, v1")
    A("v_lshl_add_u32 v21, v23, 4, v21")
    A("v_and_b32 v23, 15, v1")
    A("s_lshl_b32 s64, s%d, %d" % (S_W, shw))
    A("v_add_u32 %s, s64, v21" % v(vd))


def smf_idx(A, vd, vt):
    A("v_and_b32 %s, 8, v1" % v(vt))
    A("v_mov_b32 %s, 0x4444" % v(vd))
    A("v_mov_b32 v255, 0xeeee")
    A("v_cmp_ne_u32 vcc, 0, %s" % v(vt))
    A("v_cndmask_b32 %s, %s, v255, vcc" % (v(vd), v(vd)))


def ring_consts(A):
    A("s_lshl_b32 s84, s80, 14")
    A("s_xor_b32 s85, s84, 0x4000")
    A("s_add_u32 s84, s84, 0x%x" % (RING_P + 0x8000))
    A("s_add_u32 s85, s85, 0x%x" % RING_P)


def make_identity(A, d):
    A("v_lshrrev_b32 v21, 4, v1")
    A("v_lshlrev_b32 v21, 2, v21")
    A("v_and_b32 v23, 15, v1")
    A("v_sub_u32 v21, v23, v21")
    for c in range(2):
        A("v_cmp_eq_u32 vcc, %d, v21" % (2 * c))
        A("v_cndmask_b32 v24, 0, 1.0, vcc")
        A("v_cmp_eq_u32 vcc, %d, v21" % (2 * c + 1))
        A("v_cndmask_b32 v25, 0, 1.0, vcc")
        A("v_perm_b32 %s, v25, v24, s%d" % (v(d + c), S_SELHI))


class Gather:
    def __init__(self, A, cfg, pre, L, vgl, vstw, tmp, ident, LR, s_loc, s_rem, tail):
        self.__dict__.update(locals())

    def ld(self, dst, so, k):
        return "buffer_load_dwordx4 %s, %s, %s, s%d offen offset:%d sc1" % (v(dst + 4 * k, 4), v(self.vgl), WSR, so, 512 * (k % 2) + 128 * (k // 2))

    def widen(self, src, k, first):
        for h in range(2):
            d = v(LU + 8 * k + 4 * h, 4)
            self.A("v_mfma_f32_16x16x16_bf16 %s, %s, %s, %s" % (d, v(self.ident, 2), v(src + 4 * k + 2 * h, 2), "0" if first else d))

    def pack(self, k):
        out = [(lambda c=c: self.A("v_cvt_pk_bf16_f32 %s, %s, %s" % (v(RR + 4 * k + c), v(LU + 8 * k + 2 * c), v(LU + 8 * k + 2 * c + 1))))
               for c in range(4)]
        out.append(lambda: self.L.issue(("st", k), "ds_write_b128 %s, %s offset:%d" % (v(self.vstw), v(RR + 4 * k, 4), 1024 * k)))
        return out

    def both(self, ks):
        return [self.ld(d, so, k) for k in ks for d, so in ((self.LR, self.s_loc), (RR, self.s_rem))]

    def regs(self, ks):
        return [b + 4 * k + r for k in ks for b in (self.LR, RR) for r in range(4)]

    def check(self, ks, cnt):
        A = self.A
        back, miss = A.label("gb"), A.label("gm")
        A("s_waitcnt vmcnt(%d)" % cnt)
        check_sent(A, self.regs(ks), self.tmp)

        def out():
            A(miss + ":")
            count(A, self.cfg, ks[0])
            poll_data(A, self.both(range(ks[0], 4)), self.regs(range(ks[0], 4)), self.tmp, "gr")
            A("s_branch %s" % back)
        self.tail.append(out)
        return lambda: A("s_cbranch_vccnz %s\n%s:" % (miss, back))

    def head(self, idle, areads, afterw, shadow=()):
        A, cfg, pre = self.A, self.cfg, self.pre
        idle()
        if cfg.get(pre + "probe") == 1:
            probe(A, cfg, self.vgl, self.s_loc, self.tmp, self.tail, cfg.get(pre + "sl", 0))
        else:
            probe_pipe(A, cfg, self.vgl, self.s_loc, list(range(RR + 16 - cfg[pre + "probe"], RR + 16)), self.tail)
        stamp(A, cfg, pre + "loc")
        if cfg.get(pre + "dl"):
            A("s_sleep %d" % cfg[pre + "dl"])
        full, again = A.label("rf"), A.label("ra")
        A(full + ":")
        for x in self.both(range(4)):
            A(x)
        self.L.drain()
        A("s_waitcnt vmcnt(6)")
        check_sent(A, self.regs([0]), self.tmp)
        self.widen(self.LR, 0, True)
        A("s_cbranch_vccnz %s" % again)
        self.tail.append(lambda: (A(again + ":"), count(A, cfg, 0), spin(A, full)))
        stamp(A, cfg, pre + "rem")
        self.widen(RR, 0, False)
        n = 0
        for x in shadow:
            A(x)
            n += 1
        br = self.check([1], 4 + n)
        for f in self.pack(0):
            f()
        br()
        self.widen(self.LR, 1, True)
        self.widen(RR, 1, False)
        self.L.wait(("st", 0))
        A("s_barrier")
        stamp(A, cfg, pre + "bar")
        areads()
        br = self.check([2, 3], n)
        for f in self.pack(1):
            f()
        br()
        for k in (2, 3):
            self.widen(self.LR, k, True)
            self.widen(RR, k, False)
        afterw()

    def check_r(self, ks, cnt):
        A = self.A
        back, miss = A.label("gb"), A.label("gm")
        regs = range(RR + 4 * ks[0], RR + 4 * ks[-1] + 4)
        A("s_waitcnt vmcnt(%d)" % cnt)
        check_sent(A, regs, self.tmp)

        def out():
            A(miss + ":")
            count(A, self.cfg, ks[0])
            poll_data(A, [self.ld(RR, self.s_rem, k) for k in range(ks[0], 4)], range(RR + 4 * ks[0], RR + 16), self.tmp, "gr")
            A("s_branch %s" % back)
        self.tail.append(out)
        return lambda: A("s_cbranch_vccnz %s\n%s:" % (miss, back))

    def head_direct(self, pre_local, idle, areads, afterx, X, shadow=()):
        A, cfg, pre = self.A, self.cfg, self.pre
        pre_local()
        if cfg.get("sym", 0):
            top, rfirst, fail, go = A.label("s0"), A.label("s0r"), A.label("s0f"), A.label("s0g")
            s_loc, s_rem = self.s_loc, self.s_rem
            A(top + ":")
            for k in range(4):
                A(self.ld(self.LR, s_rem, k))
            A("buffer_load_dword %s, %s, %s, s%d offen sc1" % (v(RR), v(self.vgl), WSR, s_loc))
            A("s_waitcnt vmcnt(3)")
            check_sent(A, range(self.LR, self.LR + 8), self.tmp)
            A("s_mov_b32 s66, s%d" % s_rem)
            A("s_mov_b32 s67, s%d" % s_loc)
            A("s_cbranch_vccz %s" % go)
            A("s_waitcnt vmcnt(0)")
            A("v_cmp_eq_u32 vcc, -1, %s" % v(RR))
            A("s_mov_b32 s66, s%d" % s_loc)
            A("s_mov_b32 s67, s%d" % s_rem)
            A("s_cbranch_vccnz %s" % fail)
            for k in range(4):
                A(self.ld(self.LR, s_loc, k))
            count(A, cfg, 5)
            A(go + ":")
            self.s_loc, self.s_rem = 66, 67
            for k in range(4):
                A(self.ld(RR, self.s_rem, k))
            stamp(A, cfg, pre + "loc")
            back, miss = A.label("lb"), A.label("lm")
            A("s_waitcnt vmcnt(4)")
            check_sent(A, range(self.LR, self.LR + 16), self.tmp)
            A("s_cbranch_vccnz %s" % miss)
            A(back + ":")

            def out0():
                A(fail + ":")
                spin(A, top)
                A(miss + ":")
                count(A, cfg, 3)
                poll_data(A, [self.ld(self.LR, 66, k) for k in range(4)], range(self.LR, self.LR + 16), self.tmp, "lr")
                A("s_branch %s" % back)
            self.tail.append(out0)
        else:
            top, ok = A.label("pl"), A.label("plk")
            A(top + ":")
            for k in range(4):
                A(self.ld(self.LR, self.s_loc, k))
            A("s_waitcnt vmcnt(2)")
            check_sent(A, range(self.LR, self.LR + 8), self.tmp)
            A("s_cbranch_vccnz %s" % ok)
            for k in range(4):
                A(self.ld(RR, self.s_rem, k))
            stamp(A, cfg, pre + "loc")
            back, miss = A.label("lb"), A.label("lm")
            A("s_waitcnt vmcnt(4)")
            check_sent(A, range(self.LR + 8, self.LR + 16), self.tmp)
            A("s_cbranch_vccnz %s" % miss)
            A(back + ":")

            def out0():
                A(ok + ":")
                spin(A, top)
                A(miss + ":")
                count(A, cfg, 3)
                poll_data(A, [self.ld(self.LR, self.s_loc, k) for k in range(2, 4)], range(self.LR + 8, self.LR + 16), self.tmp, "lr")
                A("s_branch %s" % back)
            self.tail.append(out0)
        self.L.drain()
        for k in range(4):
            self.widen(self.LR, k, True)
        idle()
        chk, again = A.label("rc"), A.label("ra")
        A(chk + ":")
        A("s_waitcnt vmcnt(3)")
        check_sent(A, range(RR, RR + 4), self.tmp)
        if cfg.get("noopt"):
            A("s_cbranch_vccnz %s" % again)
        for h in range(2):
            A("v_mfma_f32_16x16x16_bf16 %s, %s, %s, %s" % (v(X + 4 * h, 4), v(self.ident, 2), v(RR + 2 * h, 2), v(LU + 4 * h, 4)))
        if not cfg.get("noopt"):
            A("s_cbranch_vccnz %s" % again)
        stamp(A, cfg, pre + "rem")

        def out():
            A(again + ":")
            count(A, cfg, 0)
            for k in range(4):
                A(self.ld(RR, self.s_rem, k))
            spin(A, chk)
        self.tail.append(out)
        n = 0
        for x in shadow:
            A(x)
            n += 1
        br = self.check_r([1], 2 + n)
        if cfg.get("brearly"):
            br()
            br = lambda: None
        for c in range(4):
            A("v_cvt_pk_bf16_f32 %s, %s, %s" % (v(RR + c), v(X + 2 * c), v(X + 2 * c + 1)))
        self.pack(0)[4]()
        br()
        self.widen(RR, 1, False)
        afterx()
        self.L.wait(("st", 0))
        A("s_barrier")
        stamp(A, cfg, pre + "bar")
        areads()
        br = self.check_r([2, 3], n)
        for f in self.pack(1):
            f()
        br()
        self.widen(RR, 2, False)
        self.widen(RR, 3, False)


def probe(A, cfg, va, so, tmp, tail, sleep):
    top, fail = A.label("pt"), A.label("pf")
    A("s_mov_b64 exec, s[%d:%d]" % (S_PM, S_PM + 1))
    A(top + ":")
    A("buffer_load_dword %s, %s, %s, s%d offen sc1" % (v(tmp), v(va), WSR, so))
    A("s_waitcnt vmcnt(0)")
    A("v_cmp_eq_u32 vcc, -1, %s" % v(tmp))
    A("s_cbranch_vccnz %s" % fail)
    A("s_mov_b64 exec, -1")

    def out():
        A(fail + ":")
        if sleep:
            A("s_sleep %d" % sleep)
        A("s_add_u32 s%d, s%d, 1" % (S_SPIN, S_SPIN))
        A("s_cmp_lt_u32 s%d, 0x%x" % (S_SPIN, SPIN_LIMIT))
        A("s_cbranch_scc1 %s" % top)
        A("s_mov_b64 exec, -1")
        A("s_branch L_giveup")
    tail.append(out)


def probe_pipe(A, cfg, va, so, regs, tail):
    top, ok = A.label("qt"), A.label("qk")
    n = len(regs)
    ld = lambda r: "buffer_load_dword %s, %s, %s, s%d offen sc1" % (v(r), v(va), WSR, so)
    A("s_mov_b64 exec, s[%d:%d]" % (S_PM, S_PM + 1))
    for r in regs[:-1]:
        A(ld(r))
        A("s_nop 7")
    A(top + ":")
    for i in range(n):
        A(ld(regs[(i + n - 1) % n]))
        A("s_waitcnt vmcnt(%d)" % (n - 1))
        A("v_cmp_eq_u32 vcc, -1, %s" % v(regs[i]))
        A("s_cbranch_vccz %s" % ok)
    A("s_add_u32 s%d, s%d, 1" % (S_SPIN, S_SPIN))
    A("s_cmp_lt_u32 s%d, 0x%x" % (S_SPIN, SPIN_LIMIT))
    A("s_cbranch_scc1 %s" % top)
    A("s_mov_b64 exec, -1")
    A("s_branch L_giveup")
    A(ok + ":")
    A("s_mov_b64 exec, -1")


def softmax(A, S, T):
    A("v_max3_f32 %s, %s, %s, %s" % (v(T), v(S), v(S + 1), v(S + 2)))
    A("v_max3_f32 %s, %s, %s, %s" % (v(T + 1), v(S + 4), v(S + 5), v(S + 6)))
    A("v_max3_f32 %s, %s, %s, %s" % (v(T), v(T), v(S + 3), v(S + 7)))
    A("v_max3_f32 %s, %s, %s, %s" % (v(T + 1), v(T + 1), v(S + 8), v(S + 9)))
    A("v_max3_f32 %s, %s, %s, %s" % (v(T), v(T), v(S + 10), v(S + 11)))
    A("v_max_f32 %s, %s, %s" % (v(T), v(T), v(T + 1)))
    for sw in ("v_permlane16_swap_b32", "v_permlane32_swap_b32"):
        A("v_mov_b32 %s, %s" % (v(T + 1), v(T)))
        A("%s %s, %s" % (sw, v(T), v(T + 1)))
        A("v_max_f32 %s, %s, %s" % (v(T), v(T), v(T + 1)))
    A("v_mul_f32 %s, s%d, %s" % (v(T), S_SCALE, v(T)))
    for i in range(12):
        A("v_fma_f32 %s, %s, s%d, -%s" % (v(S + i), v(S + i), S_SCALE, v(T)))
        if i:
            A("v_exp_f32 %s, %s" % (v(S + i - 1), v(S + i - 1)))
    A("v_exp_f32 %s, %s" % (v(S + 11), v(S + 11)))
    for i in range(6):
        A("v_cvt_pk_bf16_f32 %s, %s, %s" % (v(S + i), v(S + 2 * i), v(S + 2 * i + 1)))


def mf32(A, d, a_, b, c):
    A("v_mfma_f32_16x16x32_bf16 %s, %s, %s, %s" % (v(d, 4), v(a_, 4), v(b, 4), "0" if c is None else v(c, 4)))


def mf16(A, d, a_, b):
    A("v_mfma_f32_16x16x16_bf16 %s, %s, %s, %s" % (v(d, 4), v(a_, 2), v(b, 2), v(d, 4)))


def role_qk(A, cfg, census):
    L_STAGE, L_KVQ, L_QM, L_KM, L_WL = 0, 16384, 40960, 43264, 46080
    NL = 14
    V_FL, V_FQ, V_GL, V_IDX, V_STW, V_ST, V_THR, V_WL, V_QW, V_QR, V_VM, V_OM, V_OX, V_VX, V_QX, V_NEG = range(16)
    WR = 92
    KX, VM, VX, S, T, Q, KM = 16, 48, 56, 64, 76, 80, 96
    OXR = 80
    tail = []

    def home(p, f):
        if f == 3 and p >= 2:
            return None
        n = 4 * p + f if p < 2 else 8 + 3 * (p - 2) + f
        return 256 + 8 * n if n < 32 else 112 + 8 * (n - 32)

    A("L_role_qk:")
    chain_setup(A)
    ring_consts(A)
    A("s_cmp_lt_u32 s%d, 2" % S_W)
    srd_sel(A, SRD_A, P_WQ, P_WK, 1024 * 4096 * 2)
    smf_lane_rows(A, 20, 21, 6)
    A("v_lshlrev_b32 v20, 13, v20")
    A("v_and_b32 v21, 15, v1")
    A("v_lshl_add_u32 v20, v21, 3, v20")
    A("s_and_b32 s64, s%d, 1" % S_W)
    A("s_lshl_b32 s64, s64, 7")
    A("s_lshl_b32 s65, s82, 8")
    A("s_add_u32 s64, s64, s65")
    A("v_add_u32 v20, s64, v20")
    make_identity(A, 26)
    A("v_lshlrev_b32 v21, 3, v1")
    A("v_add_u32 v21, %d, v21" % L_ID)
    A("ds_write_b64 v21, v[26:27]")
    flag_addr_own(A, 22, 1, S_IDX)
    smf_idx(A, V_IDX, 21)
    A("v_lshlrev_b32 %s, 4, v1" % v(V_ST))
    gather_addr(A, V_GL, 12, 10, 8)
    A("v_add_u32 %s, s64, %s" % (v(V_STW), v(V_ST)))
    A("s_mul_i32 s64, s%d, %d" % (S_W, NL * 2048))
    A("s_add_u32 s64, s64, %d" % L_WL)
    A("v_add_u32 %s, s64, %s" % (v(V_WL), v(V_ST)))
    A("s_and_b32 s66, s%d, 1" % S_W)
    A("s_lshr_b32 s67, s%d, 1" % S_W)
    A("v_lshrrev_b32 v21, 5, v1")
    A("v_bfe_u32 v24, v1, 4, 1")
    A("v_lshl_add_u32 v21, v24, 1, v21")
    A("v_mul_u32_u24 v21, 576, v21")
    A("v_lshl_add_u32 v21, v23, 3, v21")
    A("s_lshl_b32 s64, s66, 7")
    A("s_mul_i32 s65, s67, %d" % (L_KM - L_QM))
    A("s_add_u32 s64, s64, s65")
    A("s_add_u32 s64, s64, %d" % L_QM)
    A("v_add_u32 %s, s64, v21" % v(V_QW))
    A("v_and_b32 v21, 7, v1")
    A("v_mul_u32_u24 v21, 288, v21")
    A("v_lshrrev_b32 v24, 4, v1")
    A("v_lshl_add_u32 %s, v24, 4, v21" % v(V_QR))
    A("s_lshl_b32 s64, s%d, 9" % S_W)
    A("v_add_u32 v21, s64, %s" % v(V_ST))
    A("v_mov_b32 v25, 0x%x" % OOB)
    A("v_cmp_gt_u32 vcc, 32, v1")
    A("v_cndmask_b32 %s, v25, v21, vcc" % v(V_VM))
    A("v_mov_b32 v26, 0xff800000")
    A("v_cndmask_b32 %s, v26, 0, vcc" % v(V_NEG))
    A("v_lshlrev_b32 v21, 7, v24")
    A("v_lshl_add_u32 v21, v23, 4, v21")
    A("v_add_u32 v21, s64, v21")
    A("v_cmp_gt_u32 vcc, 8, v23")
    A("v_cndmask_b32 %s, v25, v21, vcc" % v(V_OM))
    A("v_lshlrev_b32 v21, 9, v24")
    A("v_lshl_add_u32 v21, v23, 4, v21")
    A("s_lshl_b32 s64, s%d, 11" % S_W)
    A("s_lshl_b32 s65, s66, 8")
    A("s_add_u32 s65, s65, s64")
    A("v_add_u32 %s, s65, v21" % v(V_OX))
    A("s_add_u32 s64, s64, %d" % (L_KVQ + 8192))
    A("v_add_u32 %s, s64, %s" % (v(V_VX), v(V_ST)))
    A("s_lshl_b32 s64, s66, 12")
    A("s_add_u32 s64, s64, %d" % (L_KVQ + 16384))
    A("v_add_u32 %s, s64, %s" % (v(V_QX), v(V_ST)))
    A("s_lshl_b32 s64, s66, 4")
    A("v_add_u32 v21, s64, v23")
    A("v_lshlrev_b32 v24, 2, v24")
    A("v_sub_u32 %s, v21, v24" % v(V_THR))
    A("s_and_b32 s64, s82, 28")
    A("s_lshl_b32 s64, s64, 1")
    id_qkv_s(A, 64, 65)
    A("s_lshl_b32 s64, s64, 7")
    A("v_bfe_u32 v21, v1, 2, 3")
    A("v_lshlrev_b32 v21, 7, v21")
    A("v_and_b32 v23, 3, v1")
    A("v_lshl_add_u32 v21, v23, 2, v21")
    A("v_add_u32 %s, s64, v21" % v(V_FQ))
    A("v_mov_b32 %s, v22" % v(V_FL))
    A("s_mov_b32 s%d, 0x3e0293ee" % S_SCALE)
    A("s_lshl_b32 s86, s80, 15")
    A("s_lshl_b32 s64, s81, 11")
    A("s_add_u32 s86, s86, s64")
    A("s_add_u32 s86, s86, 0x%x" % RING_O)
    A("s_lshl_b32 s87, s82, 11")
    A("s_add_u32 s87, s87, 0x%x" % RING_V)
    A("s_mul_i32 s90, s%d, 6144" % S_W)
    A("s_mul_i32 s88, s82, 24576")
    A("s_add_u32 s88, s88, s90")
    A("s_add_u32 s88, s88, 0x%x" % KVQ)
    A("s_add_u32 s90, s90, %d" % L_KVQ)
    A("s_lshl_b32 s89, s82, 13")
    A("s_add_u32 s89, s89, 0x%x" % (OX - 0x40000))

    units = []
    for p in range(16):
        for j in range(8):
            row = mem_row(ORDER[p], j)
            outs = []
            for f in range(4):
                h = home(p, f)
                outs.append((("t", j) if h is None else h + j, f // 2, S_SELHI if f % 2 else S_SELLO))
            post = []
            if j % 4 == 3 and p >= 2:
                post = ["ds_write_b128 %s, %s offset:%d" % (v(V_WL), v(24 + j - 3, 4), (p - 2) * 2048 + (j // 4) * 1024)]
            units.append(dict(width=2, loads=[bload(2, 20, SRD_A, (row + u) * 8192) for u in range(2)], outs=outs, post=post))
    load_weights(A, units, set(range(32, 256)), [16, 17, 18, 19], ldsbuf=24, early=census.early)
    A("s_waitcnt lgkmcnt(0)")
    stamp(A, cfg, "qw")
    census(A)

    def kvq_dma():
        if cfg.get("nodma"):
            return
        A("s_mov_b32 m0, s90")
        for k in range(4):
            A("buffer_load_dwordx4 %s, %s, s88 offen offset:%d sc1 lds" % (v(V_ST), WSR, 1024 * k))
        A("s_add_u32 s64, s90, 4096")
        A("s_add_u32 s65, s88, 4096")
        A("s_mov_b32 m0, s64")
        for k in range(2):
            A("buffer_load_dwordx4 %s, %s, s65 offen offset:%d sc1 lds" % (v(V_ST), WSR, 1024 * k))
        A("s_add_u32 s88, s88, %d" % (32 * 24576))
    A("s_mov_b32 s%d, 0" % S_STEP)
    A("s_mov_b32 s96, 1")
    A("s_mov_b32 s97, 1")
    poll_flags(A, V_FQ, T + 3, 96, "fq0")
    kvq_dma()

    A("L_qk_top:")
    pstamp(A, cfg)
    A("s_and_b32 s64, s%d, 3" % S_STEP)
    A("s_lshl_b32 s64, s64, 16")
    A("s_add_u32 s91, s84, s64")
    A("s_add_u32 s92, s85, s64")
    A("s_add_u32 s93, s86, s64")
    A("s_add_u32 s94, s87, s64")
    A("s_xor_b32 s64, s64, 0x20000")
    A("s_add_u32 s95, s86, s64")
    A("s_add_u32 s96, s%d, 2" % S_STEP)
    A("s_min_u32 s96, s96, 64")
    for r in range(4):
        A("v_mov_b32 %s, -1" % v(ACC + r))
    local_store(A, ["buffer_store_dwordx4 %s, %s, %s, s95 offen" % (v(ACC, 4), v(V_OM), WSR)], tail)

    L = Cnt(A, "lgkmcnt", 15)
    G = Gather(A, cfg, "q", L, V_GL, V_STW, 110, 108, WR, 91, 92, tail)

    def wread(p, hf):
        L.issue(("w", p), "ds_read_b128 %s, %s offset:%d" % (v(WR + 8 * (p % 2) + 4 * hf, 4), v(V_WL), (p - 2) * 2048 + hf * 1024))

    def aread(p):
        L.issue(("a", p), "ds_read_b128 %s, %s offset:%d" % (v(AR + 4 * (p % 3), 4), v(V_ST), L_STAGE + ORDER[p] * 1024))

    def pre_local():
        A("v_lshrrev_b32 v110, 1, %s" % v(V_ST))
        A("v_add_u32 v110, %d, v110" % L_ID)
        L.issue("id", "ds_read_b64 v[108:109], v110")

    def idle():
        for r in range(16):
            A("v_mov_b32 %s, 0" % v(ACC + r))
        A("v_xor_b32 v111, 2048, %s" % v(V_OX))

    ox = ["buffer_store_dwordx4 %s, %s, %s, s89 offen sc1" % (v(OXR + 4 * p, 4), v(V_OX if p == 0 else 111), WSR) for p in range(2)]
    if cfg.get("qprobe"):
        G.head(lambda: (pre_local(), idle()), lambda: [aread(p) for p in range(3)], lambda: None, ox)
    else:
        G.head_direct(pre_local, lambda: (idle(), wread(2, 0), wread(2, 1)), lambda: [aread(p) for p in range(3)],
                      lambda: (wread(3, 0), wread(3, 1)), WR + 8, ox)
    extra = [("kx", KX + 4 * n, V_ST, L_KVQ + 1024 * n) for n in range(8)] + [("vx", VX + 4 * n, V_VX, 1024 * n) for n in range(2)]
    extra = [(lambda x=x: L.issue(x[0], "ds_read_b128 %s, %s offset:%d" % (v(x[1], 4), v(x[2]), x[3]))) for x in extra]
    vm_loads = ["buffer_load_dwordx4 %s, %s, %s, s94 offen sc1" % (v(VM, 4), v(V_VM), WSR),
                "buffer_load_dwordx4 %s, %s, %s, s94 offen sc1" % (v(VM + 4, 4), v(T + 2), WSR)]
    fp = cfg.get("flp", 9)
    other = {} if fp > 15 else {(fp, 2): lambda: A("v_mov_b32 v110, s%d" % S_STEP),
             (fp + 1, 2): lambda: A("s_waitcnt vmcnt(0)\nbuffer_store_dword v110, %s, %s, 0 offen sc1" % (v(V_FL), WSR))}
    packs = G.pack(2) + G.pack(3)
    q = [lambda: wread(2, 0), lambda: wread(2, 1), lambda: wread(3, 0), lambda: wread(3, 1)] if cfg.get("qprobe") else []
    for p in range(16):
        L.wait(("a", p))
        stamp(A, cfg, "qp%d" % p)
        for f in range(4):
            h = home(p, f)
            if h is None:
                L.wait(("w", p))
                smf(A, ACC + 4 * f, AR + 4 * (p % 3), v(WR + 8 * (p % 2), 8), V_IDX)
            else:
                smf(A, ACC + 4 * f, AR + 4 * (p % 3), W(h, 8), V_IDX)
            if f == 3:
                if p in (1, 5):
                    assert p == 1 or not packs
                    L.wait(("st", 1 if p == 1 else 3))
                    A("s_barrier")
                if p + 3 < 16:
                    q.append(lambda p=p: aread(p + 3))
                if p >= 2 and p + 2 < 16:
                    q += [lambda p=p: wread(p + 2, 0), lambda p=p: wread(p + 2, 1)]
            if (p, f) in other:
                other[(p, f)]()
            elif q:
                q.pop(0)()
                if packs and p >= 2:
                    packs.pop(0)()
            elif packs:
                if p:
                    packs.pop(0)()
            elif extra and p >= 4:
                extra.pop(0)()
                if p >= 13 and extra:
                    extra.pop(0)()
    assert not extra and not q, (len(extra), len(q))
    stamp(A, cfg, "qmf")
    for f in range(4):
        for u in range(2):
            A("v_permlane32_swap_b32 %s, %s" % (v(ACC + 4 * f + u), v(ACC + 4 * f + u + 2)))
        A("v_pk_add_f32 %s, %s, %s" % (v(ACC + 4 * f, 2), v(ACC + 4 * f, 2), v(ACC + 4 * f + 2, 2)))
        if f % 2:
            for u in range(2):
                A("v_cvt_pk_bf16_f32 %s, %s, %s" % (v(WR + 2 * u + f // 2), v(ACC + 4 * f - 4 + u), v(ACC + 4 * f + u)))
    for u in range(2):
        A("ds_write_b64 %s, %s offset:%d" % (v(V_QW), v(WR + 2 * u, 2), 288 * u))
    stamp(A, cfg, "qfold")
    A("v_xor_b32 %s, 512, %s" % (v(T + 2), v(V_VM)))
    for r in range(4):
        A("v_mov_b32 %s, %s" % (v(S + 8 + r), v(V_NEG)))
    A("s_waitcnt lgkmcnt(0)")
    A("s_barrier")
    stamp(A, cfg, "qbar2")
    L.q = []

    def img(dst, base, kk, tag):
        L.issue(tag, "ds_read_b128 %s, %s offset:%d" % (v(dst + 4 * kk, 4), v(V_QR), base + 64 * kk))

    A("s_cmp_eq_u32 s%d, 63" % S_STEP)
    A("s_cbranch_scc1 L_qk_last")
    for kk in range(4):
        img(Q, L_QM, kk, ("q", kk))
    for kk in range(4):
        img(KM, L_KM, kk, ("km", kk))
    back, miss = A.label("vb"), A.label("vm")
    for x in vm_loads:
        A(x)
    chk = ["v_max3_u32 %s, %s, %s, %s" % (v(T + 3), v(VM), v(VM + 1), v(VM + 2)),
           "v_max3_u32 %s, %s, %s, %s" % (v(T + 3), v(T + 3), v(VM + 3), v(VM + 4)),
           "v_max3_u32 %s, %s, %s, %s" % (v(T + 3), v(T + 3), v(VM + 5), v(VM + 6)),
           "v_max_u32 %s, %s, %s" % (v(T + 3), v(T + 3), v(VM + 7)),
           "v_cmp_eq_u32 vcc, -1, %s" % v(T + 3), "s_cbranch_vccnz %s\n%s:" % (miss, back)]

    def out(back=back, miss=miss):
        A(miss + ":")
        count(A, cfg, 4)
        poll_data(A, vm_loads, range(VM, VM + 8), T + 3, "pvm")
        A("s_branch %s" % back)
    tail.append(out)
    for kk in range(4):
        L.wait(("q", kk))
        mf32(A, S, KX + 4 * kk, Q + 4 * kk, None if kk == 0 else S)
        mf32(A, S + 4, KX + 16 + 4 * kk, Q + 4 * kk, None if kk == 0 else S + 4)
    ONE, O = 80, 84
    fillers = [["v_mov_b32 %s, 0x3f803f80" % v(ONE), "v_mov_b32 %s, 0x3f803f80" % v(ONE + 1)],
               ["v_mov_b32 %s, 0x3f803f80" % v(ONE + 2), "v_mov_b32 %s, 0x3f803f80" % v(ONE + 3)],
               [],
               ["v_max3_f32 %s, %s, %s, %s" % (v(T), v(S), v(S + 1), v(S + 2)),
                "v_max3_f32 %s, %s, %s, %s" % (v(T + 1), v(S + 4), v(S + 5), v(S + 6)),
                "v_max3_f32 %s, %s, %s, %s" % (v(T), v(T), v(S + 3), v(S + 7)),
                "v_max_f32 %s, %s, %s" % (v(T), v(T), v(T + 1))]]
    for kk in (1, 2, 3, 0):
        L.wait(("km", kk))
        mf32(A, S + 8, KM + 4 * kk, Q + 4 * kk, S + 8)
        if kk == 0:
            for x in fillers[0] + fillers[1] + fillers[3]:
                A(x)
    stamp(A, cfg, "qs")
    A("v_max3_f32 %s, %s, %s, %s" % (v(T), v(T), v(S + 8), v(S + 9)))
    A("v_max3_f32 %s, %s, %s, %s" % (v(T), v(T), v(S + 10), v(S + 11)))
    A("s_waitcnt vmcnt(0)")
    for sw in ("v_permlane16_swap_b32", "v_permlane32_swap_b32"):
        A("v_mov_b32 %s, %s" % (v(T + 1), v(T)))
        A(chk.pop(0))
        A(chk.pop(0))
        A("%s %s, %s" % (sw, v(T), v(T + 1)))
        A("v_max_f32 %s, %s, %s" % (v(T), v(T), v(T + 1)))
    A("v_mul_f32 %s, s%d, %s" % (v(T), S_SCALE, v(T)))
    A(chk.pop(0))

    def fma(i):
        A("v_fma_f32 %s, %s, s%d, -%s" % (v(S + i), v(S + i), S_SCALE, v(T)))

    def ex(i):
        A("v_exp_f32 %s, %s" % (v(S + i), v(S + i)))

    def cv(i):
        A("v_cvt_pk_bf16_f32 %s, %s, %s" % (v(S + i), v(S + 2 * i), v(S + 2 * i + 1)))
    fma(0)
    for i in range(8):
        fma(i + 1)
        ex(i)
        if i == 2:
            A(chk.pop(0))
        if i in (3, 5, 7):
            cv((i - 3) // 2)
    fma(9)
    cv(3)
    ex(8)
    fma(10)
    mf32(A, O + 8, ONE, S, None)
    ex(9)
    fma(11)
    mf32(A, O, VX, S, None)
    ex(10)
    ex(11)
    mf32(A, O + 4, VX + 4, S, None)
    cv(4)
    cv(5)
    stamp(A, cfg, "qsm")
    mf16(A, O + 8, ONE, S + 4)
    mf16(A, O, VM, S + 4)
    mf16(A, O + 4, VM + 2, S + 4)
    A("s_cmp_lg_u32 s%d, 0" % S_SLOW)
    A("v_rcp_f32 %s, %s" % (v(T), v(O + 8)))
    for c in range(4):
        A("v_pk_mul_f32 %s, %s, %s op_sel_hi:[1,0]" % (v(O + 2 * c, 2), v(O + 2 * c, 2), v(T, 2)))
        A("v_cvt_pk_bf16_f32 %s, %s, %s" % (v(S + c), v(O + 2 * c), v(O + 2 * c + 1)))
        A("v_min_u32 %s, s%d, %s" % (v(S + c), S_CLAMP, v(S + c)))
    local_store(A, ["buffer_store_dwordx4 %s, %s, %s, s93 offen" % (v(S, 4), v(V_OM), WSR)], tail, True)
    stamp(A, cfg, "qpub")

    A("L_qk_x:")
    if cfg.get("nox"):
        A("s_branch L_qk_xe")
    L.q = []
    if fp > 15:
        set_flag(A, V_FL, T + 1, S_STEP)
    seen1, seen2 = A.label("sn"), A.label("sn")
    A("s_cmp_ge_u32 s97, s96")
    A("s_cbranch_scc1 %s" % seen1)
    A("buffer_load_dword %s, %s, %s, 0 offen sc1" % (v(T + 3), v(V_FQ), WSR))
    A(seen1 + ":")
    for kk in range(4):
        L.issue(("q", kk), "ds_read_b128 %s, %s offset:%d" % (v(Q + 4 * kk, 4), v(V_QX), 1024 * kk))
    A("v_mov_b32 %s, 0xff800000" % v(T))
    for i in range(8):
        A("v_cmp_gt_i32 vcc, %d, %s" % (16 * (i // 4) + i % 4, v(V_THR)))
        A("v_cndmask_b32 %s, 0, %s, vcc" % (v(S + i), v(T)))
    for r in range(4):
        A("v_mov_b32 %s, %s" % (v(S + 8 + r), v(V_NEG)))
    A("v_xor_b32 %s, 2048, %s" % (v(T + 2), v(V_VX)))
    for kk in range(4):
        L.wait(("q", kk))
        mf32(A, S, KX + 4 * kk, Q + 4 * kk, S)
        mf32(A, S + 4, KX + 16 + 4 * kk, Q + 4 * kk, S + 4)
        mf32(A, S + 8, KM + 4 * kk, Q + 4 * kk, S + 8)
        if kk == 2:
            for n in range(2):
                L.issue("vb", "ds_read_b128 %s, %s offset:%d" % (v(KX + 4 * n, 4), v(T + 2), 1024 * n))
    L.drain()
    A("s_barrier")
    A("s_cmp_ge_u32 s97, s96")
    A("s_cbranch_scc1 %s" % seen2)
    poll_flags(A, V_FQ, T + 3, 96, "fq", preissued=0)
    A("s_add_u32 s97, s96, 6")
    A("s_min_u32 s97, s97, 64")
    A("v_cmp_gt_u32 vcc, s97, %s" % v(T + 3))
    A("s_cmp_eq_u64 vcc, 0")
    A("s_cselect_b32 s97, s97, s96")
    A(seen2 + ":")
    if cfg.get("dmal", 0) == 0:
        kvq_dma()
    for r in range(4):
        A("v_mov_b32 %s, 0x3f803f80" % v(108 + r))
    softmax(A, S, T)
    if cfg.get("dmal", 0) == 1:
        kvq_dma()
    O = 88
    mf32(A, O + 16, 108, S, None)
    mf32(A, O, VX, S, None)
    mf32(A, O + 4, VX + 4, S, None)
    mf32(A, O + 8, KX, S, None)
    mf32(A, O + 12, KX + 4, S, None)
    mf16(A, O + 16, 108, S + 4)
    for n in range(4):
        mf16(A, O + 4 * n, VM + 2 * n, S + 4)
    A("v_rcp_f32 %s, %s" % (v(T), v(O + 16)))
    for c in range(8):
        A("v_pk_mul_f32 %s, %s, %s op_sel_hi:[1,0]" % (v(O + 2 * c, 2), v(O + 2 * c, 2), v(T, 2)))
        A("v_cvt_pk_bf16_f32 %s, %s, %s" % (v(OXR + c), v(O + 2 * c), v(O + 2 * c + 1)))
    if cfg.get("dmal", 0) == 2:
        kvq_dma()
    A("L_qk_xe:")
    stamp(A, cfg, "qx")
    stamp_flush(A, cfg, 108, 6)
    A("s_add_u32 s89, s89, 0x40000")
    A("s_add_u32 s%d, s%d, 1" % (S_STEP, S_STEP))
    A("s_cmp_lt_u32 s%d, %d" % (S_STEP, cfg.get("undef", 61)))
    A("s_cbranch_scc1 L_qk_top")
    A("v_xor_b32 v111, 2048, %s" % v(V_OX))
    for p in range(2):
        A("buffer_store_dwordx4 %s, %s, %s, s89 offen sc1" % (v(OXR + 4 * p, 4), v(V_OX if p == 0 else 111), WSR))
    A("s_waitcnt vmcnt(0)")
    set_flag(A, V_FL, 108, S_STEP)
    A("s_cmp_lt_u32 s%d, 64" % S_STEP)
    A("s_cbranch_scc1 L_qk_top")
    pstamp_flush(A, cfg, 110)
    miss_flush(A, cfg, 110)
    A("s_endpgm")
    A("L_qk_last:")
    for kk in range(4):
        img(KM, L_KM, kk, ("km", kk))
    poll_data(A, vm_loads, range(VM, VM + 8), T, "pvl")
    A("s_waitcnt lgkmcnt(0)")
    A("s_branch L_qk_x")
    for f in tail:
        f()


def role_vo(A, cfg, census):
    L_RED, L_WL = 16384, 26624
    V_GL, V_IDX, V_ST, V_WL, V_VM, V_OG, V_RW, V_RR, V_PO, V_STW = 2, 3, 4, 5, 6, 7, 8, 9, 13, 0
    IDN = 10
    T, OF, LR = 14, 16, 96
    WSL = [112, 120, 96, 104]
    WOP = [48, 56, 80, 88, 96, 104, 112, 120]
    tail = []

    def vhome(p, f):
        if f == 1 and p % 2:
            return None
        n = p + p // 2 + (p % 2) + f
        return 256 + 192 + 8 * n if n < 8 else 128 + 8 * (n - 8)
    assert sorted(h for p in range(16) for f in range(2) for h in [vhome(p, f)] if h) == sorted([448 + 8 * n for n in range(8)] + [128 + 8 * n for n in range(16)])

    A("L_role_vo:")
    chain_setup(A)
    ring_consts(A)
    srd(A, SRD_A, P_WV, 1024 * 4096 * 2)
    srd(A, SRD_B, P_WO, 1024 * 4096 * 2)
    smf_idx(A, V_IDX, 21)
    make_identity(A, IDN)
    gather_addr(A, V_OG, 13, 11, 9)
    gather_addr(A, V_GL, 12, 10, 8)
    A("v_lshlrev_b32 %s, 4, v1" % v(V_ST))
    A("v_add_u32 %s, s64, %s" % (v(V_STW), v(V_ST)))
    A("v_lshrrev_b32 v21, 4, v1")
    A("v_lshrrev_b32 v20, 5, v1")
    A("v_lshlrev_b32 v20, 2, v20")
    A("v_bfe_u32 v22, v1, 4, 1")
    A("v_add_u32 v20, v20, v22")
    A("s_lshl_b32 s64, s%d, 6" % S_W)
    A("v_add_u32 v20, s64, v20")
    A("v_lshlrev_b32 v20, 13, v20")
    A("v_lshlrev_b32 v21, 2, v21")
    A("v_xor_b32 v21, v21, v23")
    A("v_lshl_add_u32 v20, v21, 4, v20")
    A("s_lshl_b32 s64, s82, 8")
    A("v_add_u32 v20, s64, v20")
    A("v_bfe_u32 v21, v1, 4, 1")
    A("v_bfe_u32 v22, v1, 2, 1")
    A("v_lshl_add_u32 v21, v21, 1, v22")
    A("v_and_b32 v22, 3, v1")
    A("s_lshl_b32 s64, s%d, 2" % S_W)
    A("v_add_u32 v22, s64, v22")
    A("v_lshlrev_b32 v96, 2, v21")
    A("v_xor_b32 v22, v22, v96")
    A("v_lshlrev_b32 v22, 4, v22")
    A("v_lshl_add_u32 v22, v21, 8, v22")
    A("v_bfe_u32 v21, v1, 3, 1")
    A("v_lshl_add_u32 v22, v21, 10, v22")
    A("v_lshrrev_b32 v21, 5, v1")
    A("v_lshl_add_u32 v96, v21, 12, v22")
    hi_copies(A, 96)
    A("s_lshl_b32 s83, s%d, 12" % S_W)
    smf_lane_rows(A, 22, 21, 7)
    A("v_lshlrev_b32 v21, 11, v22")
    A("v_lshl_add_u32 v21, v23, 3, v21")
    A("s_lshl_b32 s64, s80, 22")
    A("s_lshl_b32 s65, s%d, 20" % S_W)
    A("s_add_u32 s64, s64, s65")
    A("s_lshl_b32 s65, s81, 7")
    A("s_add_u32 s64, s64, s65")
    A("v_add_u32 v21, s64, v21")
    A("s_lshl_b32 s64, s%d, 15" % S_W)
    A("s_add_u32 s64, s64, %d" % L_WL)
    A("v_add_u32 %s, s64, %s" % (v(V_WL), v(V_ST)))
    A("v_and_b32 v24, 31, v1")
    A("v_lshlrev_b32 v24, 4, v24")
    A("v_lshrrev_b32 v25, 5, v1")
    A("v_lshl_add_u32 v24, v25, 3, v24")
    A("s_lshl_b32 s64, s%d, 9" % S_W)
    A("v_add_u32 %s, s64, v24" % v(V_VM))
    A("v_bfe_u32 v24, v1, 4, 1")
    A("v_lshl_add_u32 v24, v24, 1, v25")
    A("v_mul_u32_u24 v24, 576, v24")
    A("v_lshl_add_u32 v24, v23, 5, v24")
    A("s_mul_i32 s64, s%d, 2304" % S_W)
    A("s_add_u32 s64, s64, %d" % L_RED)
    A("v_add_u32 %s, s64, v24" % v(V_RW))
    A("v_bfe_u32 v24, v1, 3, 2")
    A("v_mul_u32_u24 v26, 576, v24")
    A("v_bfe_u32 v24, v1, 2, 1")
    A("v_lshl_add_u32 v26, v24, 2, v26")
    A("v_lshl_add_u32 v26, v25, 6, v26")
    A("v_and_b32 v27, 3, v1")
    A("v_lshl_add_u32 v26, v27, 4, v26")
    A("s_lshl_b32 s64, s%d, 7" % S_W)
    A("s_add_u32 s64, s64, %d" % L_RED)
    A("v_add_u32 %s, s64, v26" % v(V_RR))
    A("v_bfe_u32 v24, v1, 2, 3")
    A("s_lshl_b32 s64, s81, 10")
    A("s_lshl_b32 s65, s%d, 8" % S_W)
    A("s_add_u32 s64, s64, s65")
    A("v_lshlrev_b32 v26, 2, v1")
    A("v_add_u32 %s, s64, v26" % v(V_PO))
    A("v_lshlrev_b32 v12, 11, v24")
    A("v_lshl_add_u32 v12, v25, 4, v12")
    A("v_lshl_add_u32 v12, v27, 2, v12")
    A("s_lshl_b32 s64, s81, 7")
    A("s_lshl_b32 s65, s%d, 5" % S_W)
    A("s_add_u32 s64, s64, s65")
    A("v_add_u32 v12, s64, v12")
    A("s_lshl_b32 s86, s80, 15")
    A("s_add_u32 s86, s86, 0x%x" % RING_O)
    A("s_lshl_b32 s87, s82, 11")
    A("s_add_u32 s87, s87, 0x%x" % RING_V)
    A("s_xor_b32 s88, s85, 0x4000")

    wv = []
    for p in range(16):
        ks = ORDER[p]
        reads = []
        for f in range(2):
            h = vhome(p, f)
            if h is None:
                h = 32 + 8 * (p // 2)
            reads += [(h + 2 * jp, 96, (jp // 2) * 8192 + (jp % 2) * 2048 + 8 * f) for jp in range(4)]
        wv.append(dict(slabs=[(SRD_A, 20, (256 * (ks // 4) + 32 * (ks % 2) + 8 * (ks % 4 // 2) + 2 * (s_ // 2) + 16 * (s_ % 2)) * 8192, 1024 * s_) for s_ in range(4)],
                       reads=reads))
    load_weights_tr(A, wv, 16, 9, 83, early=census.early, shared=True)
    A("s_barrier")
    for n in range(16):
        A("ds_write_b128 %s, %s offset:%d" % (v(V_WL), v(32 + 4 * n, 4), 16384 + 1024 * n))
    A("s_waitcnt lgkmcnt(0)")
    wo = []
    for k in range(8):
        for j in range(8):
            row = 64 * (k % 2) + 8 * (k // 2) + 256 * (j // 4) + 32 * (j % 2) + 2 * ((j % 4) // 2)
            post = []
            if j % 4 == 3:
                post = ["ds_write_b128 %s, %s offset:%d" % (v(V_WL), v(24 + j - 3, 4), k * 2048 + (j // 4) * 1024)]
            wo.append(dict(width=2, loads=[bload(2, 21, SRD_B, (row + u) * 2048) for u in range(2)], post=post,
                           outs=[(256 + 24 * k + 8 * f + j if f < 3 else ("t", j), f // 2, S_SELHI if f % 2 else S_SELLO) for f in range(4)]))
    load_weights(A, wo, set(range(32, 128)), [16, 17, 18, 19], ldsbuf=24)
    A("s_waitcnt lgkmcnt(0)")
    srd(A, SRD_A, P_MEM, 8 * 1024 * 2)
    A("buffer_load_dword v16, v12, s[%d:%d], 0 offen" % (SRD_A, SRD_A + 3))
    stamp(A, cfg, "vw")
    census(A)
    A("s_cmp_eq_u32 s80, 0")
    A("s_cselect_b32 s64, -1, 0")
    A("s_waitcnt vmcnt(0)")
    A("v_and_b32 v16, s64, v16")
    A("v_min_u32 v16, s%d, v16" % S_CLAMP)
    A("buffer_store_dword v16, %s, %s, s88 offen sc1" % (v(V_PO), WSR))
    local_store(A, ["buffer_store_dword v16, %s, %s, s84 offen" % (v(V_PO), WSR)])
    A("s_mov_b32 s%d, 0" % S_STEP)

    A("L_vo_top:")
    A("s_and_b32 s64, s%d, 3" % S_STEP)
    A("s_lshl_b32 s64, s64, 16")
    A("s_add_u32 s91, s84, s64")
    A("s_add_u32 s92, s85, s64")
    A("s_add_u32 s93, s86, s64")
    A("s_add_u32 s94, s87, s64")
    A("s_xor_b32 s65, s64, 0x20000")
    A("s_add_u32 s66, s64, 0x10000")
    A("s_and_b32 s66, s66, 0x30000")
    A("s_add_u32 s95, s88, s66")
    A("s_add_u32 s96, s84, s66")
    A("s_add_u32 s97, s88, s65")
    A("s_add_u32 s89, s84, s65")
    A("s_add_u32 s90, s87, s65")
    L = Cnt(A, "lgkmcnt", 15)
    G = Gather(A, cfg, "v", L, V_GL, V_STW, 12, IDN, LR, 91, 92, tail)

    def wread(n, hf):
        L.issue(("w", n), "ds_read_b128 %s, %s offset:%d" % (v(WSL[n % 4] + 4 * hf, 4), v(V_WL), (8 + n) * 2048 + hf * 1024))

    def aread(p):
        L.issue(("a", p), "ds_read_b128 %s, %s offset:%d" % (v(AR + 4 * (p % 4), 4), v(V_ST), ORDER[p] * 1024))

    def idle():
        for r in range(8):
            A("v_mov_b32 %s, 0" % v(ACC + r))
        A("v_mov_b32 %s, -1" % v(T))
        A("v_mov_b32 %s, -1" % v(T + 1))
        for n in range(2):
            wread(n, 0)
            wread(n, 1)

    w23 = lambda: [wread(n, hf) for n in (2, 3) for hf in range(2)]
    if cfg.get("vprobe"):
        G.head(idle, lambda: [aread(p) for p in range(4)], w23)
    else:
        G.head_direct(lambda: None, lambda: (idle(), w23()), lambda: [aread(p) for p in range(4)], lambda: None, ACC + 8)
    packs = G.pack(2) + G.pack(3)
    q = []
    for p in range(16):
        L.wait(("a", p))
        stamp(A, cfg, "vp%d" % p)
        smf(A, ACC, AR + 4 * (p % 4), W(vhome(p, 0), 8), V_IDX)
        if packs:
            if p:
                packs.pop(0)()
                packs.pop(0)()
        elif p == 5:
            A("buffer_store_dword %s, %s, %s, s97 offen sc1" % (v(T), v(V_PO), WSR))
        elif q:
            q.pop(0)()
        h = vhome(p, 1)
        if h is None:
            L.wait(("w", p // 2))
            smf(A, ACC + 4, AR + 4 * (p % 4), v(WSL[(p // 2) % 4], 8), V_IDX)
        else:
            smf(A, ACC + 4, AR + 4 * (p % 4), W(h, 8), V_IDX)
        if packs:
            packs.pop(0)()
            if p == 0:
                packs.pop(0)()
        if p in (0, 4):
            assert p == 0 or not packs
            L.wait(("st", 1 if p == 0 else 3))
            A("s_barrier")
        if p + 4 < 16:
            aread(p + 4)
        if h is None and p // 2 + 4 < 8:
            q += [lambda p=p: wread(p // 2 + 4, 0), lambda p=p: wread(p // 2 + 4, 1)]
        if q and p >= 12:
            q.pop(0)()
    assert not q
    stamp(A, cfg, "vmf")
    for r in range(4):
        A("v_permlane32_swap_b32 %s, %s" % (v(ACC + r), v(ACC + 4 + r)))
    for r in range(0, 4, 2):
        A("v_pk_add_f32 %s, %s, %s" % (v(ACC + r, 2), v(ACC + r, 2), v(ACC + 4 + r, 2)))
    for r in range(2):
        A("v_cvt_pk_bf16_f32 %s, %s, %s" % (v(OF + r), v(ACC + 2 * r), v(ACC + 2 * r + 1)))
        A("v_min_u32 %s, s%d, %s" % (v(OF + r), S_CLAMP, v(OF + r)))
    local_store(A, ["buffer_store_dwordx2 %s, %s, %s, s94 offen" % (v(OF, 2), v(V_VM), WSR),
                    "buffer_store_dwordx2 %s, %s, %s, s90 offen" % (v(T, 2), v(V_VM), WSR),
                    "buffer_store_dword %s, %s, %s, s89 offen" % (v(T), v(V_PO), WSR)], tail)
    stamp(A, cfg, "vvm")
    A("s_cmp_eq_u32 s%d, 63" % S_STEP)
    A("s_cbranch_scc1 %s" % ("L_vo_end" if cfg.get("cnt") else "L_end"))
    if cfg.get("cnt"):
        tail.append(lambda: (A("L_vo_end:"), miss_flush(A, cfg, 16), A("s_endpgm")))
    RRK = T
    A("v_add_u32 v1, %d, %s" % (3 * 2304, v(V_RR)))
    for k in range(8):
        for hf in range(2):
            A("ds_read_b128 %s, %s offset:%d" % (v(WOP[k] + 4 * hf, 4), v(V_WL), k * 2048 + hf * 1024))
    A("v_add_u32 %s, 2304, %s" % (v(T), v(V_RR)))
    A("v_add_u32 %s, 4608, %s" % (v(T + 1), v(V_RR)))
    A("s_waitcnt lgkmcnt(0)")
    ol = ["buffer_load_dwordx4 %s, %s, %s, s93 offen offset:%d sc1" % (v(OF + 4 * k, 4), v(V_OG), WSR, 1024 * (k % 2) + 128 * (k // 2)) for k in range(8)]
    again, ofail = A.label("oa"), A.label("oc")
    for r in range(16):
        A("v_mov_b32 %s, 0" % v(ACC + r))
    NP = cfg.get("onp", 4)
    if cfg.get("oprobe") == 1:
        probe(A, cfg, V_OG, 93, 12, tail, cfg.get("osl", 0))
    elif cfg.get("oprobe"):
        probe_pipe(A, cfg, V_OG, 93, list(range(OF + 32 - cfg["oprobe"], OF + 32)), tail)
    A(again + ":")
    for k in range(NP):
        A(ol[k])
    A("s_waitcnt vmcnt(%d)" % (NP - 2))
    check_sent(A, range(OF, OF + 8), 12)
    A("s_cbranch_vccnz %s" % ofail)
    tail.append(lambda: (A(ofail + ":"), count(A, cfg, 3) if cfg.get("oprobe") else None, spin(A, again)))
    for k in range(NP, 8):
        A(ol[k])
    stamp(A, cfg, "vo")
    for k in range(8):
        n = OF + 4 * k + 4
        back, miss = A.label("ob"), A.label("om")
        chk = ["s_waitcnt vmcnt(%d)\nv_max3_u32 v12, %s, %s, %s" % (6 - k, v(n), v(n + 1), v(n + 2)),
               "v_max_u32 v12, v12, %s\nv_cmp_eq_u32 vcc, -1, v12" % v(n + 3), "", "s_cbranch_vccnz %s\n%s:" % (miss, back)]
        for f in range(4):
            smf(A, ACC + 4 * f, OF + 4 * k, a(24 * k + 8 * f, 8) if f < 3 else v(WOP[k], 8), V_IDX)
            if 0 < k < 7:
                A(chk[f])
        if 0 < k < 7:
            def out(back=back, miss=miss, k=k):
                A(miss + ":")
                count(A, cfg, 4 if k < 3 else 5)
                poll_data(A, ol[k + 1:], range(OF + 4 * k + 4, OF + 32), 12, "por")
                A("s_branch %s" % back)
            tail.append(out)
    stamp(A, cfg, "vmf2")
    rfail = A.label("of")
    for f in range(4):
        for u in range(2):
            A("v_permlane32_swap_b32 %s, %s" % (v(ACC + 4 * f + u), v(ACC + 4 * f + u + 2)))
        A("v_pk_add_f32 %s, %s, %s" % (v(OF + 2 * f, 2), v(ACC + 4 * f, 2), v(ACC + 4 * f + 2, 2)))
        if f % 2:
            A("ds_write_b128 %s, %s offset:%d" % (v(V_RW), v(OF + 2 * f - 2, 4), 8 * (f - 1)))
    if cfg.get("px4"):
        A("v_and_b32 v12, 12, %s" % v(V_PO))
        A("v_cmp_eq_u32 vcc, 0, v12")
        A("v_mov_b32 v12, 0x%x" % OOB)
        A("v_cndmask_b32 v12, v12, %s, vcc" % v(V_PO))
    A("s_waitcnt lgkmcnt(0)")
    A("s_barrier")
    stamp(A, cfg, "vbar2")
    for k in range(4):
        A("ds_read2_b32 %s, %s offset1:2" % (v(ACC + 2 * k, 2), v((V_RR, T, T + 1, 1)[k])))
    A("s_cmp_lg_u32 s%d, 0" % S_SLOW)
    A("s_waitcnt lgkmcnt(2)")
    A("v_pk_add_f32 %s, %s, %s" % (v(ACC, 2), v(ACC, 2), v(ACC + 2, 2)))
    A("s_waitcnt lgkmcnt(0)")
    A("v_pk_add_f32 %s, %s, %s" % (v(ACC + 4, 2), v(ACC + 4, 2), v(ACC + 6, 2)))
    A("v_pk_add_f32 %s, %s, %s" % (v(ACC, 2), v(ACC, 2), v(ACC + 4, 2)))
    A("v_cvt_pk_bf16_f32 %s, %s, %s" % (v(ACC), v(ACC), v(ACC + 1)))
    A("v_min_u32 %s, s%d, %s" % (v(ACC), S_CLAMP, v(ACC)))
    if cfg.get("px4"):
        for k in range(1, 4):
            A("v_mov_b32_dpp %s, %s quad_perm:[%d,%d,%d,%d] row_mask:0xf bank_mask:0xf" % (v(ACC + k), v(ACC), k, k, k, k))
        op, dat, va = "buffer_store_dwordx4", v(ACC, 4), v(12)
    else:
        op, dat, va = "buffer_store_dword", v(ACC), v(V_PO)
    if not cfg.get("locfirst", 0):
        A("%s %s, %s, %s, s95 offen sc1" % (op, dat, va, WSR))
    local_store(A, ["%s %s, %s, %s, s96 offen" % (op, dat, va, WSR)], tail, True)
    if cfg.get("locfirst", 0):
        A("%s %s, %s, %s, s95 offen sc1" % (op, dat, va, WSR))
    stamp(A, cfg, "vpub")
    stamp_flush(A, cfg, OF, 6)
    A("s_add_u32 s%d, s%d, 1" % (S_STEP, S_STEP))
    A("s_branch L_vo_top")
    for f in tail:
        f()
```

```python
from asmlib import Asm, v, a, s, W

NAME = "sequential_preLN__memory_aug_recurrent_mem_tr__geglu_ffn__prompt"

WS_BYTES = 268435456
FLAGS = 0x0
RING_P = 0x10000
RING_O = 0x50000
RING_V = 0x90000
RING_END = 0xD0000
XN = 0x200000
STAMPS = 0x700000
KVQ = 0x0C00000
OX = 0x4000000
HF = 0x6400000
HS = 0x6800000
ACT = 0x7000000

ID_WO, ID_F2, ID_QKV, ID_F1, ID_AUX = 64, 128, 80, 192, 220


def id_qkv_s(A, sr, st):
    A("s_lshr_b32 s%d, s%d, 4" % (st, sr))
    A("s_lshl_b32 s%d, s%d, 5" % (st, st))
    A("s_and_b32 s%d, s%d, 15" % (sr, sr))
    A("s_add_u32 s%d, s%d, s%d" % (sr, sr, st))
    A("s_add_u32 s%d, s%d, %d" % (sr, sr, ID_QKV))


P_X, P_MEM, P_WQ, P_WK, P_WV, P_WO = 8, 10, 12, 14, 16, 18
P_WG, P_WU, P_WD, P_OUT, P_DBG, P_WS = 24, 26, 28, 30, 32, 34
SRD_WS, SRD_DBG, SRD_A, SRD_B = 36, 40, 44, 48
S_W, S_IDX, S_SLOW, S_STEP, S_XCC, S_TICK, S_CENS, S_SPIN = 56, 57, 58, 59, 60, 61, 62, 63
S_SELLO, S_SELHI, S_CLAMP, S_SUB = 52, 53, 54, 55
S_T = 64
S_R = 80
SPIN_LIMIT = 1 << 17
OOB = 0x7FFF0000


class Cnt:
    def __init__(self, asm, name, mx):
        self.asm, self.name, self.mx = asm, name, mx
        self.q = []

    def issue(self, tag, text):
        self.asm(text)
        self.q.append(tag)

    def wait(self, tag):
        if tag not in self.q:
            return
        i = len(self.q) - 1 - self.q[::-1].index(tag)
        n = min(len(self.q) - 1 - i, self.mx)
        self.asm("s_waitcnt %s(%d)" % (self.name, n))
        self.q = self.q[len(self.q) - n:] if n else []

    def drain(self):
        self.asm("s_waitcnt %s(0)" % self.name)
        self.q = []


def srd(A, d, ptr, nbytes):
    A("s_mov_b32 s%d, s%d" % (d, ptr))
    A("s_and_b32 s%d, s%d, 0xffff" % (d + 1, ptr + 1))
    A("s_mov_b32 s%d, 0x%x" % (d + 2, nbytes))
    A("s_mov_b32 s%d, 0x20000" % (d + 3))


def srd_sel(A, d, ptr_true, ptr_false, nbytes):
    A("s_cselect_b32 s%d, s%d, s%d" % (d, ptr_true, ptr_false))
    A("s_cselect_b32 s%d, s%d, s%d" % (d + 1, ptr_true + 1, ptr_false + 1))
    A("s_and_b32 s%d, s%d, 0xffff" % (d + 1, d + 1))
    A("s_mov_b32 s%d, 0x%x" % (d + 2, nbytes))
    A("s_mov_b32 s%d, 0x20000" % (d + 3))


def spin(A, again, sleep=0):
    if sleep:
        A("s_sleep %d" % sleep)
    A("s_add_u32 s%d, s%d, 1" % (S_SPIN, S_SPIN))
    A("s_cmp_lt_u32 s%d, 0x%x" % (S_SPIN, SPIN_LIMIT))
    A("s_cbranch_scc1 %s" % again)
    A("s_branch L_giveup")


def check_sent(A, regs, tmp):
    regs = list(regs)
    if len(regs) == 2:
        A("v_max_u32 %s, %s, %s" % (v(tmp), v(regs[0]), v(regs[1])))
        rest = []
    else:
        A("v_max3_u32 %s, %s, %s, %s" % (v(tmp), v(regs[0]), v(regs[1]), v(regs[2])))
        rest = regs[3:]
    while len(rest) >= 2:
        A("v_max3_u32 %s, %s, %s, %s" % (v(tmp), v(tmp), v(rest[0]), v(rest[1])))
        rest = rest[2:]
    if rest:
        A("v_max_u32 %s, %s, %s" % (v(tmp), v(tmp), v(rest[0])))
    A("v_cmp_eq_u32 vcc, -1, %s" % v(tmp))


def poll_data(A, loads, regs, tmp, stem):
    top, ok = A.label(stem), A.label(stem + "_ok")
    A(top + ":")
    for t in loads:
        A(t)
    A("s_waitcnt vmcnt(0)")
    check_sent(A, regs, tmp)
    A("s_cbranch_vccz %s" % ok)
    spin(A, top)
    A(ok + ":")


def poll_flags(A, voff, vtmp, starget, stem, preissued=None, sleep=0):
    top, ok = A.label(stem), A.label(stem + "_ok")
    if preissued is not None:
        A("s_waitcnt vmcnt(%d)" % preissued)
        A("v_cmp_gt_u32 vcc, s%d, %s" % (starget, v(vtmp)))
        A("s_cbranch_vccz %s" % ok)
    A(top + ":")
    A("buffer_load_dword %s, %s, s[%d:%d], 0 offen sc1" % (v(vtmp), v(voff), SRD_WS, SRD_WS + 3))
    A("s_waitcnt vmcnt(0)")
    A("v_cmp_gt_u32 vcc, s%d, %s" % (starget, v(vtmp)))
    A("s_cbranch_vccz %s" % ok)
    spin(A, top, sleep)
    A(ok + ":")


def local_store(A, text, tail=None, scc_ready=False):
    sl, dn = A.label("sl"), A.label("sd")
    if not scc_ready:
        A("s_cmp_lg_u32 s%d, 0" % S_SLOW)
    A("s_cbranch_scc1 %s" % sl)
    for t in text:
        A(t)

    def slow():
        A(sl + ":")
        for t in text:
            A(t + " sc1")
    if tail is None:
        A("s_branch %s" % dn)
        slow()
        A(dn + ":")
    else:
        A(dn + ":")
        tail.append(lambda: (slow(), A("s_branch %s" % dn)))


def set_flag(A, voff, vtmp, sval):
    A("v_mov_b32 %s, s%d" % (v(vtmp), sval))
    A("buffer_store_dword %s, %s, s[%d:%d], 0 offen sc1" % (v(vtmp), v(voff), SRD_WS, SRD_WS + 3))


def flag_addr_own(A, vd, vlane, sid):
    A("s_lshl_b32 s%d, s%d, 7" % (S_T, sid))
    A("s_lshl_b32 s%d, s%d, 2" % (S_T + 1, S_W))
    A("s_add_u32 s%d, s%d, s%d" % (S_T, S_T, S_T + 1))
    A("v_mov_b32 %s, 0x%x" % (v(vd), OOB))
    A("v_mov_b32 v255, s%d" % S_T)
    A("v_cmp_eq_u32 vcc, 0, %s" % v(vlane))
    A("v_cndmask_b32 %s, %s, v255, vcc" % (v(vd), v(vd)))


def stamp(A, cfg, name):
    if cfg.get("stamps"):
        if isinstance(name, int):
            A("s_memrealtime s[%d:%d]" % (68 + 2 * name, 69 + 2 * name))
        elif name in cfg["sp"]:
            k = cfg["sp"].index(name) % 6
            A("%s s[%d:%d]" % ("s_memtime" if cfg.get("cyc") else "s_memrealtime", 68 + 2 * k, 69 + 2 * k))


def miss(A, cfg, k):
    if cfg.get("cnt"):
        r = (20, 21, 22, 23, 6, 7)[k]
        A("s_add_u32 s%d, s%d, 1" % (r, r))


def miss_flush(A, cfg, vr):
    if cfg.get("cnt"):
        A("s_waitcnt lgkmcnt(0)")
        for k, r in enumerate((20, 21, 22, 23, 6, 7)):
            A("s_mov_b32 s%d, s%d" % (68 + 2 * k, r))
        A("s_add_u32 s%d, s%d, 100" % (S_STEP, S_W))
        A("s_mov_b32 s%d, 0" % S_W)
        stamp_flush(A, dict(stamps=1), vr, 6)


def pstamp(A, cfg):
    if cfg.get("pst"):
        for k, st in enumerate((0, 8, 60)):
            l = A.label("ps")
            A("s_cmp_lg_u32 s%d, %d" % (S_STEP, st))
            A("s_cbranch_scc1 %s" % l)
            A("s_memrealtime s[%d:%d]" % (68 + 4 * k, 69 + 4 * k))
            if k:
                A("s_memtime s[%d:%d]" % (66 + 4 * k, 67 + 4 * k))
            A(l + ":")


def dbg_time(A, cfg, vr, regs, first, idx, wave):
    if not cfg.get("dst"):
        return
    skip = A.label("dt")
    A("s_memrealtime s[78:79]")
    A("s_waitcnt lgkmcnt(0)")
    A("s_cmp_lg_u32 s%d, %d" % (S_IDX, idx))
    A("s_cbranch_scc1 %s" % skip)
    A("s_cmp_lg_u32 s%d, %d" % (S_W, wave))
    A("s_cbranch_scc1 %s" % skip)
    A("v_mbcnt_lo_u32_b32 %s, -1, 0" % v(vr + 1))
    A("v_lshlrev_b32 %s, 2, %s" % (v(vr + 1), v(vr + 1)))
    for k, (r, base) in enumerate(regs):
        A("s_sub_u32 s64, s%d, s%d" % (r, base))
        A("v_writelane_b32 %s, s64, %d" % (v(vr), k))
    A("s_mov_b64 exec, %d" % ((1 << len(regs)) - 1))
    A("buffer_store_dword %s, %s, s[%d:%d], 0 offen offset:%d" % (v(vr), v(vr + 1), SRD_DBG, SRD_DBG + 3, 4 * first))
    A("s_mov_b64 exec, -1")
    A(skip + ":")


def pstamp_flush(A, cfg, vr):
    dbg_time(A, cfg, vr, [(68, 100), (76, 72), (74, 70), (78, 100)], 1, 0, 0)
    if cfg.get("pst") and not cfg.get("dst"):
        A("s_memrealtime s[78:79]")
        A("s_mov_b32 s%d, 0" % S_STEP)
        stamp_flush(A, dict(stamps=1), vr, 6)


def stamp_flush(A, cfg, vr, n=6, first=0, sreg=None):
    if not cfg.get("stamps"):
        return
    st = S_STEP if sreg is None else sreg
    skip = A.label("st")
    A("s_waitcnt lgkmcnt(0)")
    if cfg.get("allw"):
        A("s_lshl_b32 s4, s%d, 8" % S_W)
        A("s_add_u32 s4, s4, s%d" % S_IDX)
        A("s_lshl_b32 s4, s4, 12")
    else:
        A("s_cmp_lg_u32 s%d, 0" % S_W)
        A("s_cbranch_scc1 %s" % skip)
        A("s_lshl_b32 s4, s%d, 12" % S_IDX)
    A("s_lshl_b32 s5, s%d, 5" % st)
    A("s_add_u32 s4, s4, s5")
    A("s_add_u32 s4, s4, 0x%x" % (STAMPS + 4 * first))
    A("v_mbcnt_lo_u32_b32 %s, -1, 0" % v(vr + 1))
    A("v_lshlrev_b32 %s, 2, %s" % (v(vr + 1), v(vr + 1)))
    for k in range(n):
        A("v_writelane_b32 %s, s%d, %d" % (v(vr), 68 + 2 * k, k))
    A("s_mov_b64 exec, %d" % ((1 << n) - 1))
    A("buffer_store_dword %s, %s, s[%d:%d], s4 offen" % (v(vr), v(vr + 1), SRD_WS, SRD_WS + 3))
    A("s_mov_b64 exec, -1")
    A(skip + ":")


def load_weights(A, units, pool, temps, ldsbuf=None, maxfly=30, wait_every=2, early=None):
    first = {}
    for n, u in enumerate(units):
        for d, _, _ in u["outs"]:
            if not isinstance(d, tuple) and d < 256:
                first.setdefault(d, n)
    busy = set()
    land = {}
    issued = 0
    tk = [0]

    def alloc(n, cnt):
        for r in sorted(pool, reverse=True):
            if r % 2:
                continue
            rr = range(r, r + cnt)
            if all((x in pool) and (x not in busy) and first.get(x, 1 << 30) > n for x in rr):
                return r
        return None

    def issue(n):
        wd = units[n]["width"]
        r = alloc(n, 2 * wd)
        if r is None:
            return False
        busy.update(range(r, r + 2 * wd))
        land[n] = r
        for k in range(2):
            for t in units[n]["loads"][k](r + k * wd):
                A(t)
        return True

    waited = -1
    for n, u in enumerate(units):
        while issued < len(units) and issued - n < maxfly and issue(issued):
            issued += 1
        assert issued > n, "loader ran out of landing registers"
        if n == 0 and early:
            A("s_waitcnt vmcnt(%d)" % (2 * issued))
            early(A)
        if waited < n:
            waited = min(n + wait_every - 1, issued - 1)
            A("s_waitcnt vmcnt(%d)" % (2 * (issued - 1 - waited)))
        r, wd = land[n], u["width"]
        for d, c, sel in u["outs"]:
            if isinstance(d, tuple):
                dv = ldsbuf + d[1]
            elif d >= 256:
                dv = temps[tk[0] % len(temps)]
                tk[0] += 1
            else:
                dv = d
            A("v_perm_b32 %s, %s, %s, s%d" % (v(dv), v(r + wd + c), v(r + c), sel))
            if not isinstance(d, tuple) and d >= 256:
                A("v_accvgpr_write_b32 %s, %s" % (W(d), v(dv)))
        for t in u.get("post", ()):
            A(t)
        busy.difference_update(range(r, r + 2 * wd))


def load_weights_tr(A, units, ukb, nslots, s_ring, early=None, shared=False, cfg={}, nt=True):
    V = Cnt(A, "vmcnt", 63)
    L = Cnt(A, "lgkmcnt", 15)
    issued = 0

    def issue(n):
        if n >= nslots and not shared:
            L.wait(("u", n - nslots))
        for srd_, va, off, lo in units[n]["slabs"]:
            A("s_add_u32 m0, s%d, %d" % (s_ring, (n % nslots) * ukb * 1024 + lo))
            A("s_mov_b32 s%d, 0x%x" % (S_T, off))
            V.issue(("u", n), "buffer_load_dwordx4 %s, s[%d:%d], s%d offen%s lds" % (v(va), srd_, srd_ + 3, S_T, " nt" if nt else ""))

    def ahead(n):
        nonlocal issued
        while issued < len(units) and issued < n + nslots - (1 if n else 0) and len(V.q) + len(units[issued]["slabs"]) <= 60:
            issue(issued)
            issued += 1

    for n, u in enumerate(units):
        if not shared or n == 0:
            ahead(n)
        if n == 0 and early:
            A("s_waitcnt vmcnt(%d)" % len(V.q))
            early(A)
        V.wait(("u", n))
        stamp(A, cfg, "u%d" % n)
        if shared:
            L.wait(("u", n - 1))
            A("s_barrier")
            ahead(n + 1 if n else 0)
        for dst, vl, off in u["reads"]:
            L.issue(("u", n), "ds_read_b64_tr_b16 %s, %s offset:%d" % (W(dst, 2), v(vl + ((n % nslots) * ukb * 1024 + off) // 65536), ((n % nslots) * ukb * 1024 + off) % 65536))
    L.drain()


def hi_copies(A, vl, n=2):
    for k in range(1, n + 1):
        A("v_add_u32 %s, 0x%x, %s" % (v(vl + k), 65536 * k, v(vl)))


def bload(width, voff, srd_, off):
    op = "buffer_load_dword" if width == 1 else "buffer_load_dwordx%d" % width

    def f(reg):
        return ["s_mov_b32 s%d, 0x%x" % (S_T, off),
                "%s %s, %s, s[%d:%d], s%d offen nt" % (op, v(reg, width), v(voff), srd_, srd_ + 3, S_T)]
    return f


def smf_row(j):
    return 32 * (j // 4) + 8 * (j % 2) + 2 * ((j % 4) // 2)
```

```python
from common import *

WSR = "s[%d:%d]" % (SRD_WS, SRD_WS + 3)
AR_ = "s[%d:%d]" % (SRD_A, SRD_A + 3)
BR_ = "s[%d:%d]" % (SRD_B, SRD_B + 3)


def flag_lanes(A, vd, vt, sbase, ncu, per32=None):
    A("v_lshrrev_b32 %s, 2, v0" % v(vt))
    A("v_min_u32 %s, %d, %s" % (v(vt), ncu - 1, v(vt)))
    A("v_add_u32 %s, s%d, %s" % (v(vt), sbase, v(vt)))
    A("v_lshlrev_b32 %s, 7, %s" % (v(vt), v(vt)))
    A("v_and_b32 %s, 3, v0" % v(vd))
    A("v_lshl_add_u32 %s, %s, 2, %s" % (v(vd), v(vd), v(vt)))


def dma_block(A, vaddr, s_lds, s_glob, n, t0=S_T):
    out = []
    for k in range(n):
        grp = []
        if k % 4 == 0:
            grp.append("s_add_u32 s%d, s%d, %d" % (t0, s_lds, 1024 * k))
            grp.append("s_add_u32 s%d, s%d, %d" % (t0 + 1, s_glob, 1024 * k))
            grp.append("s_mov_b32 m0, s%d" % t0)
        grp.append("buffer_load_dwordx4 %s, %s, s%d offen offset:%d sc1 lds" % (v(vaddr), WSR, t0 + 1, 1024 * (k % 4)))
        out.append(grp)
    return out


def late_start(A, cfg, census, vtmp):
    census(A)
    if cfg.get("nolate"):
        return
    A("v_mov_b32 %s, %d" % (v(vtmp), ID_QKV * 128))
    A("s_mov_b32 s86, 1")
    poll_flags(A, vtmp, vtmp + 1, 86, "late", sleep=cfg.get("lsleep", 24))


def role_qkv(A, cfg, census):
    V_L16, V_FL, V_FX, V_DM, V_OT, V_OV, V_RD = 2, 3, 4, 5, 6, 7, 8
    ACC, FR, T = 16, 48, 96
    DEPTH = 4
    A("L_role_qkv:")
    A("s_sub_u32 s80, s%d, 64" % S_IDX)
    A("s_lshr_b32 s80, s80, 5")
    A("s_lshl_b32 s80, s80, 4")
    A("s_and_b32 s64, s%d, 15" % S_IDX)
    A("s_add_u32 s80, s80, s64")
    A("s_and_b32 s66, s%d, 1" % S_W)
    A("s_lshr_b32 s67, s%d, 1" % S_W)
    srd(A, SRD_A, P_WQ, 1024 * 4096 * 2)
    srd(A, SRD_B, P_WK, 1024 * 4096 * 2)
    srd(A, 4, P_WV, 1024 * 4096 * 2)
    A("v_lshrrev_b32 v20, 3, v0")
    A("s_lshl_b32 s64, s%d, 3" % S_W)
    A("v_add_u32 v20, s64, v20")
    A("v_lshlrev_b32 v20, 13, v20")
    A("v_bfe_u32 v21, v0, 4, 1")
    A("v_lshlrev_b32 v21, 2, v21")
    A("v_and_b32 v22, 7, v0")
    A("v_xor_b32 v21, v21, v22")
    A("v_lshl_add_u32 v20, v21, 4, v20")
    A("s_lshl_b32 s64, s80, 7")
    A("v_add_u32 v20, s64, v20")
    A("v_xor_b32 v21, 256, v20")
    A("v_xor_b32 v22, 512, v20")
    A("s_lshl_b32 s83, s%d, 10" % S_W)
    A("v_lshrrev_b32 v24, 4, v0")
    A("v_bfe_u32 v25, v0, 2, 2")
    A("v_lshl_add_u32 v24, v24, 3, v25")
    A("v_lshlrev_b32 v24, 7, v24")
    A("v_and_b32 v23, 3, v0")
    A("v_lshl_add_u32 v24, v23, 4, v24")
    A("v_bfe_u32 v25, v0, 3, 1")
    A("v_xor_b32 v26, s66, v25")
    A("v_lshl_add_u32 v32, v26, 6, v24")
    A("s_lshl_b32 s64, s67, 12")
    A("v_add_u32 v32, s64, v32")
    hi_copies(A, 32)
    A("v_xor_b32 v26, s67, v25")
    A("v_lshl_add_u32 v36, v26, 6, v24")
    A("s_lshl_b32 s64, s66, 3")
    A("s_add_u32 s64, s64, 8192")
    A("v_add_u32 v36, s64, v36")
    hi_copies(A, 36)
    flag_addr_own(A, V_FL, 0, S_IDX)
    A("v_lshlrev_b32 %s, 4, v0" % v(V_L16))
    A("s_lshl_b32 s81, s%d, 13" % S_W)
    A("v_add_u32 %s, s81, %s" % (v(V_DM), v(V_L16)))
    A("v_add_u32 v23, %d, v23" % ID_AUX)
    A("v_lshlrev_b32 v23, 7, v23")
    A("s_lshl_b32 s64, s%d, 2" % S_W)
    A("s_add_u32 s64, s64, 64")
    A("v_add_u32 %s, s64, v23" % v(V_FX))
    A("s_and_b32 s64, s80, 1")
    A("s_lshl_b32 s65, s64, 1")
    A("s_add_u32 s65, s65, s66")
    A("s_lshl_b32 s65, s65, 10")
    A("s_lshr_b32 s82, s80, 1")
    A("s_xor_b32 s84, s82, s67")
    A("s_mul_i32 s84, s84, 24576")
    A("s_add_u32 s65, s65, s84")
    A("s_cmp_lt_u32 s%d, 2" % S_W)
    A("s_cselect_b32 s84, 16384, 0")
    A("s_add_u32 s65, s65, s84")
    A("v_add_u32 %s, s65, %s" % (v(V_OT), v(V_L16)))
    A("s_lshl_b32 s65, s64, 2")
    A("s_add_u32 s65, s65, s%d" % S_W)
    A("s_lshl_b32 s65, s65, 10")
    A("s_add_u32 s65, s65, 8192")
    A("s_xor_b32 s84, s82, 2")
    A("s_mul_i32 s84, s84, 24576")
    A("s_add_u32 s65, s65, s84")
    A("v_add_u32 %s, s65, %s" % (v(V_OV), v(V_L16)))
    A("s_mov_b32 s82, 0x%x" % KVQ)

    def home(kk, t):
        n = 3 * kk + t
        return 256 + 4 * n if n < 64 else 128 + 4 * (n - 64)
    units = []
    for kk in range(32):
        units.append(dict(slabs=[(sr, 20 + m, 32 * kk * 8192, 4096 * m) for m, sr in enumerate((SRD_A, SRD_B, 4))],
                          reads=[(home(kk, f) + 2 * hf, 32, 512 * hf + 8 * f) for f in range(2) for hf in range(2)] +
                                [(home(kk, 2) + 2 * hf, 36, 512 * hf) for hf in range(2)]))
    load_weights_tr(A, units, 12, 13, 83, early=census.early, shared=True, cfg=cfg)
    stamp(A, cfg, "pw")
    census(A)
    A("s_add_u32 s83, s82, 4096")
    A("s_barrier")

    def dma(sl, sg):
        return dma_block(A, V_DM, sl, sg, 8)
    A("s_mov_b32 s%d, 0" % S_STEP)
    A("s_mov_b32 s84, 0x%x" % XN)
    A("s_mov_b32 s85, s81")
    A("s_mov_b32 s86, 1")
    poll_flags(A, V_FX, T, 86, "fx0")
    A("s_add_u32 s87, s84, 32768")
    A("s_add_u32 s88, s85, 32768")
    for g in dma(85, 84) + dma(88, 87):
        for t in g:
            A(t)
    A("v_mov_b32 %s, %s" % (v(V_RD), v(V_L16)))
    A("v_xor_b32 %s, 0x1000, %s" % (v(V_FX), v(V_FX)))
    A("buffer_load_dword %s, %s, %s, 0 offen sc1" % (v(T + 12), v(V_FX), WSR))
    A("s_waitcnt vmcnt(0)")

    A("L_qkv_top:")
    A("s_waitcnt vmcnt(3)")
    A("s_barrier")
    stamp(A, cfg, "pa")
    L = Cnt(A, "lgkmcnt", 15)

    def rd(kk):
        for tt in range(2):
            L.issue(kk, "ds_read_b128 %s, %s offset:%d" % (v(FR + 8 * (kk % DEPTH) + 4 * tt, 4), v(V_RD), 32768 * tt + 1024 * kk))
    for kk in range(DEPTH - 1):
        rd(kk)
    A("s_add_u32 s84, s84, 0x10000")
    A("s_xor_b32 s85, s85, 0x10000")
    A("s_add_u32 s87, s84, 32768")
    A("s_add_u32 s88, s85, 32768")
    A("s_add_u32 s86, s%d, 3" % S_STEP)
    A("s_lshr_b32 s86, s86, 1")
    A("s_min_u32 s86, s86, 32")
    poll_flags(A, V_FX, T + 12, 86, "fx", preissued=3)
    A("v_xor_b32 %s, 0x1000, %s" % (v(V_FX), v(V_FX)))
    groups = dma(85, 84) + dma(88, 87)
    ndma = 0
    for kk in range(32):
        L.wait(kk)
        f = FR + 8 * (kk % DEPTH)
        n = 0
        for t in range(3):
            for tt in range(2):
                d = ACC + 8 * t + 4 * tt
                c = "0" if kk == 0 else v(d, 4)
                wv, xv = W(home(kk, t), 4), v(f + 4 * tt, 4)
                A("v_mfma_f32_16x16x32_bf16 %s, %s, %s, %s" % ((v(d, 4), wv, xv, c) if t < 2 else (v(d, 4), xv, wv, c)))
                n += 1
                if n == 1 and kk + DEPTH - 1 < 32:
                    rd(kk + DEPTH - 1)
                if n == 4 and groups:
                    for t_ in groups.pop(0):
                        A(t_)
                    ndma += 1
                if n == 4 and kk == 18:
                    A("s_waitcnt vmcnt(%d)" % ndma)
                    set_flag(A, V_FL, T + 13, S_STEP)
                if n == 4 and kk == 30:
                    A("buffer_load_dword %s, %s, %s, 0 offen sc1" % (v(T + 12), v(V_FX), WSR))
    assert not groups
    stamp(A, cfg, "pb")
    for tt in range(2):
        for c in range(4):
            b = ACC + 8 * (c // 2) + 4 * tt + 2 * (c % 2)
            A("v_cvt_pk_bf16_f32 %s, %s, %s" % (v(T + 4 * tt + c), v(b), v(b + 1)))
        A("buffer_store_dwordx4 %s, %s, %s, s%d offen sc1" % (v(T + 4 * tt, 4), v(V_OT), WSR, 82 + tt))
    for r in range(4):
        A("v_cvt_pk_bf16_f32 %s, %s, %s" % (v(T + 8 + r), v(ACC + 16 + 2 * r), v(ACC + 17 + 2 * r)))
    A("buffer_store_dwordx4 %s, %s, %s, s82 offen sc1" % (v(T + 8, 4), v(V_OV), WSR))
    stamp(A, cfg, "pc")
    stamp_flush(A, cfg, T + 14, 6)
    A("v_xor_b32 %s, 0x10000, %s" % (v(V_RD), v(V_RD)))
    A("s_add_u32 s82, s82, %d" % (32 * 24576))
    A("s_add_u32 s83, s83, %d" % (32 * 24576))
    A("s_add_u32 s%d, s%d, 1" % (S_STEP, S_STEP))
    A("s_cmp_gt_u32 s%d, 2" % S_STEP)
    A("s_cbranch_scc1 L_qkv_next")
    A("s_waitcnt vmcnt(0)")
    set_flag(A, V_FL, T + 13, S_STEP)
    A("L_qkv_next:")
    A("s_cmp_lt_u32 s%d, 64" % S_STEP)
    A("s_cbranch_scc1 L_qkv_top")
    A("s_waitcnt vmcnt(0)")
    set_flag(A, V_FL, T + 13, S_STEP)
    dbg_time(A, cfg, 16, [(78, 100)], 7, ID_QKV, 0)
    A("s_endpgm")


def role_proj(A, cfg, census, name):
    wo = name == "wo"
    NK = 64 if wo else 56
    D = cfg.get("pd", 16)
    RING = 32
    V_L16, V_FL, V_FP, V_IN, V_RW, V_RR, V_L4, V_HF, V_RM = 2, 3, 4, 5, 6, 7, 9, 10, 11
    ACC, T, RES, OUT, FR = 16, 48, 52, 56, 64
    A("L_role_%s:" % name)
    A("s_bfe_u32 s80, s%d, 0x10005" % S_IDX)
    A("s_lshl_b32 s80, s80, 4")
    A("s_and_b32 s81, s%d, 15" % S_IDX)
    A("s_add_u32 s81, s81, s80")
    srd(A, SRD_A, P_WO if wo else P_WD, (4096 if wo else 3584) * 2048)
    A("v_lshrrev_b32 v20, 2, v0")
    A("v_lshlrev_b32 v20, 11, v20")
    A("v_and_b32 v23, 3, v0")
    A("v_lshl_add_u32 v20, v23, 4, v20")
    A("s_mul_i32 s64, s%d, %d" % (S_W, NK * 16 * 2048))
    A("s_lshl_b32 s65, s81, 6")
    A("s_add_u32 s64, s64, s65")
    A("v_add_u32 v20, s64, v20")
    A("v_lshrrev_b32 v22, 5, v0")
    A("v_bfe_u32 v21, v0, 2, 2")
    A("v_lshl_add_u32 v21, v22, %d, v21" % (3 if wo else 2))
    A("v_lshlrev_b32 v21, 6, v21")
    A("v_bfe_u32 v24, v0, 4, 1")
    A("v_lshl_add_u32 v21, v24, 5, v21")
    A("v_and_b32 v24, 1, v0")
    A("v_lshl_add_u32 v21, v24, 4, v21")
    A("v_bfe_u32 v24, v0, 1, 1")
    A("v_lshl_add_u32 v21, v24, 3, v21")
    A("s_mul_i32 s83, s%d, 40960" % S_W)
    A("v_add_u32 v21, s83, v21")
    flag_addr_own(A, V_FL, 0, S_IDX)
    A("v_lshlrev_b32 %s, 4, v0" % v(V_L16))
    A("s_mul_i32 s64, s%d, %d" % (S_W, NK * 1024))
    A("v_add_u32 %s, s64, %s" % (v(V_IN), v(V_L16)))
    A("s_lshr_b32 s64, s%d, 1" % S_W)
    A("s_lshl_b32 s64, s64, 5")
    A("s_and_b32 s65, s%d, 1" % S_W)
    A("s_mul_i32 s65, s65, %d" % (8 if wo else 14))
    A("s_add_u32 s64, s64, s65")
    if not wo:
        A("s_add_u32 s64, s64, %d" % ID_F1)
    flag_lanes(A, V_FP, 24, 64, 8 if wo else 14)
    A("s_lshl_b32 s64, s%d, 12" % S_W)
    A("v_add_u32 %s, s64, %s" % (v(V_RW), v(V_L16)))
    A("s_lshl_b32 s64, s%d, 11" % S_W)
    A("v_add_u32 %s, s64, %s" % (v(V_RR), v(V_L16)))
    A("s_lshl_b32 s64, s81, 1")
    A("s_and_b32 s65, s%d, 1" % S_W)
    A("s_add_u32 s96, s64, s65")
    A("s_lshl_b32 s64, s96, 1")
    A("v_add_u32 v25, s64, v22")
    A("v_and_b32 v23, 31, v0")
    A("v_lshlrev_b32 v26, 4, v23")
    A("v_lshl_add_u32 %s, v25, 9, v26" % v(V_HF))
    A("v_lshlrev_b32 v26, 11, v23")
    A("v_lshl_add_u32 %s, v25, 4, v26" % v(V_RM))
    A("v_lshlrev_b32 %s, 2, v0" % v(V_L4))
    A("s_lshl_b32 s96, s96, 8")
    A("s_add_u32 s96, s96, 0x%x" % HS)
    srd(A, SRD_B, P_X if wo else P_OUT, 2048 * 2048)
    late_start(A, cfg, census, 30)
    units = []
    for u in range(NK // 2):
        units.append(dict(slabs=[(SRD_A, 20, 16 * (2 * u + k) * 2048, 1024 * k) for k in range(2)],
                          reads=[(256 + 4 * (2 * u + k) + 2 * hf, 21, 1024 * k + (256 if wo else 512) * hf) for k in range(2) for hf in range(2)]))
    load_weights_tr(A, units, 2, cfg.get("lslots", 16), 83, nt=False)
    A("s_mov_b32 s%d, 0" % S_STEP)
    A("s_mov_b32 s84, 0x%x" % (OX if wo else ACT))
    A("s_mov_b32 s93, 0")
    BLK = 0x40000 if wo else 224 * 1024

    def load(ks, sb, slot):
        if ks % 4 == 0:
            A("s_add_u32 s97, s%d, %d" % (sb, 1024 * ks))
        A("buffer_load_dwordx4 %s, %s, %s, s97 offen offset:%d sc1" % (v(FR + 4 * slot, 4), v(V_IN), WSR, 1024 * (ks % 4)))

    A("L_%s_wait:" % name)
    A("s_add_u32 s86, s%d, 1" % S_STEP)
    A("buffer_load_dword %s, %s, %s, 0 offen sc1" % (v(T), v(V_FP), WSR))
    A("s_waitcnt vmcnt(0)")
    if wo:
        set_flag(A, V_FL, T + 1, S_STEP)
        A("s_mov_b32 s93, s%d" % S_STEP)
    A("s_cmp_eq_u32 s%d, 64" % S_STEP)
    A("s_cbranch_scc1 %s" % ("L_%s_end" % name if cfg.get("dst") else "L_end"))
    poll_flags(A, V_FP, T, 86, "fp", preissued=1)
    A("L_%s_go:" % name)
    for ks in range(D):
        load(ks, 84, ks)
    A("L_%s_top:" % name)
    stamp(A, cfg, name + "a")
    A("s_lshl_b32 s64, s%d, 16" % S_STEP)
    if wo:
        A("buffer_load_dwordx4 %s, %s, %s, s64 offen" % (v(RES, 4), v(V_RM), BR_))
    else:
        A("s_add_u32 s64, s64, 0x%x" % HF)
        A("buffer_load_dwordx4 %s, %s, %s, s64 offen sc1" % (v(RES, 4), v(V_HF), WSR))
    A("s_add_u32 s86, s%d, 2" % S_STEP)
    slot = lambda ks: ks if ks < D else D + (ks - D) % (RING - D)
    FK = NK - 2 * D - 4
    for ks in range(NK):
        n = D - 1 + (1 if ks < D else 0) + (1 if FK < ks <= FK + D else 0) + (1 if ks > NK - 3 else 0)
        A("s_waitcnt vmcnt(%d)" % n)
        d = v(ACC, 16)
        A("v_mfma_f32_32x32x16_bf16 %s, %s, %s, %s" % (d, a(4 * ks, 4), v(FR + 4 * slot(ks), 4), "0" if ks == 0 else d))
        if ks + D < NK:
            load(ks + D, 84, slot(ks + D))
        else:
            load(ks + D - NK, 90, ks + D - NK)
        if ks == 10 and wo:
            told = A.label("told")
            A("s_cmp_eq_u32 s93, s%d" % S_STEP)
            A("s_cbranch_scc1 %s" % told)
            A("s_waitcnt vmcnt(%d)" % (ks + 2))
            set_flag(A, V_FL, T + 1, S_STEP)
            A("s_mov_b32 s93, s%d" % S_STEP)
            A(told + ":")
        if ks == FK:
            A("buffer_load_dword %s, %s, %s, 0 offen sc1" % (v(T), v(V_FP), WSR))
        if ks == NK - D - 3:
            A("v_cmp_gt_u32 vcc, s86, %s" % v(T))
        if ks == NK - D - 1:
            A("s_add_u32 s84, s84, %d" % BLK)
            A("s_cmp_eq_u64 vcc, 0")
            A("s_cselect_b32 s87, 1, 0")
            A("s_cselect_b32 s90, s84, 0x%x" % OOB)
        if ks == NK - 3:
            A("buffer_load_dword %s, %s, %s, 0 offen sc1" % (v(T), v(V_FP), WSR))
    stamp(A, cfg, name + "b")
    A("s_barrier")
    for j in range(4):
        A("ds_write_b128 %s, %s offset:%d" % (v(V_RW), v(ACC + 4 * j, 4), 1024 * j))
    A("s_waitcnt lgkmcnt(0)")
    A("s_barrier")
    join = A.label("join")
    A("s_cmp_ge_u32 s%d, 2" % S_W)
    A("s_cbranch_scc1 %s" % join)
    for k in range(4):
        for f in range(2):
            A("ds_read_b128 %s, %s offset:%d" % (v(ACC + 8 * k + 4 * f, 4), v(V_RR), 4096 * k + 1024 * f))
    for d in range(4):
        A("v_lshlrev_b32 %s, 16, %s" % (v(OUT + 2 * d), v(RES + d)))
        A("v_and_b32 %s, 0xffff0000, %s" % (v(OUT + 2 * d + 1), v(RES + d)))
    for k in range(4):
        A("s_waitcnt lgkmcnt(%d)" % (6 - 2 * k))
        for d in range(4):
            A("v_pk_add_f32 %s, %s, %s" % (v(OUT + 2 * d, 2), v(OUT + 2 * d, 2), v(ACC + 8 * k + 2 * d, 2)))
    A("s_lshl_b32 s64, s%d, 16" % S_STEP)
    for d in range(4):
        A("v_cvt_pk_bf16_f32 %s, %s, %s" % (v(ACC + d), v(OUT + 2 * d), v(OUT + 2 * d + 1)))
    if wo:
        A("s_add_u32 s65, s64, 0x%x" % HF)
        A("buffer_store_dwordx4 %s, %s, %s, s65 offen sc1" % (v(ACC, 4), v(V_HF), WSR))
        A("v_pk_mul_f32 %s, %s, %s" % (v(ACC + 6, 2), v(OUT, 2), v(OUT, 2)))
        for d in range(1, 4):
            A("v_pk_fma_f32 %s, %s, %s, %s" % (v(ACC + 6, 2), v(OUT + 2 * d, 2), v(OUT + 2 * d, 2), v(ACC + 6, 2)))
            A("v_pk_add_f32 %s, %s, %s" % (v(OUT, 2), v(OUT, 2), v(OUT + 2 * d, 2)))
        A("v_add_f32 %s, %s, %s" % (v(OUT), v(OUT), v(OUT + 1)))
        A("v_add_f32 %s, %s, %s" % (v(OUT + 1), v(ACC + 6), v(ACC + 7)))
        A("s_lshr_b32 s64, s64, 2")
        A("s_add_u32 s64, s64, s96")
        A("v_permlane32_swap_b32 %s, %s" % (v(OUT), v(OUT + 1)))
        A("v_add_f32 %s, %s, %s" % (v(OUT), v(OUT), v(OUT + 1)))
        A("buffer_store_dword %s, %s, %s, s64 offen sc1" % (v(OUT), v(V_L4), WSR))
    else:
        A("buffer_store_dwordx4 %s, %s, %s, s64 offen%s" % (v(ACC, 4), v(V_RM), BR_, {0: "", 1: " sc1", 2: " nt", 3: " sc0 sc1"}[cfg.get("outsc1", 0)]))
    A(join + ":")
    stamp(A, cfg, name + "c")
    stamp_flush(A, cfg, ACC + 8, 3)
    A("s_add_u32 s%d, s%d, 1" % (S_STEP, S_STEP))
    A("s_cmp_lg_u32 s87, 0")
    A("s_cbranch_scc1 L_%s_top" % name)
    A("s_waitcnt vmcnt(2)")
    A("v_cmp_gt_u32 vcc, s86, %s" % v(T))
    A("s_cbranch_vccz L_%s_go" % name)
    A("s_branch L_%s_wait" % name)
    if cfg.get("dst"):
        A("L_%s_end:" % name)
        dbg_time(A, cfg, 16, [(78, 100)], 5 if wo else 6, ID_WO if wo else ID_F2, 0)
        A("s_endpgm")


def role_f1(A, cfg, census):
    V_L16, V_FL, V_FH, V_DM, V_SW, V_SR, V_RD = 2, 3, 4, 5, 6, 7, 8
    ACC, CS, FR, T, ST, SL = 16, 32, 48, 96, 120, 128
    DEPTH = 6
    L_ST = 131072
    A("L_role_f1:")
    A("s_bfe_u32 s80, s%d, 0x10005" % S_IDX)
    A("s_mul_i32 s80, s80, 28")
    A("s_and_b32 s64, s%d, 31" % S_IDX)
    A("s_add_u32 s80, s80, s64")
    srd(A, SRD_A, P_WG, 1024 * 7168)
    srd(A, SRD_B, P_WU, 1024 * 7168)
    A("s_lshl_b32 s82, s80, 2")
    A("s_add_u32 s82, s82, s%d" % S_W)
    A("v_lshrrev_b32 v20, 3, v0")
    A("s_lshl_b32 s64, s%d, 4" % S_W)
    A("v_add_u32 v20, s64, v20")
    A("v_mul_u32_u24 v20, 7168, v20")
    A("s_lshl_b32 s64, s80, 7")
    A("v_add_u32 v20, s64, v20")
    A("v_bfe_u32 v21, v0, 4, 1")
    A("v_lshlrev_b32 v21, 1, v21")
    A("v_and_b32 v22, 7, v0")
    A("v_xor_b32 v21, v21, v22")
    A("v_xor_b32 v22, 4, v21")
    A("v_lshl_add_u32 v22, v22, 4, v20")
    A("v_lshl_add_u32 v20, v21, 4, v20")
    A("s_lshl_b32 s83, s%d, 11" % S_W)
    A("v_lshrrev_b32 v21, 5, v0")
    A("v_bfe_u32 v23, v0, 2, 2")
    A("v_lshl_add_u32 v21, v21, 3, v23")
    A("v_lshlrev_b32 v21, 7, v21")
    A("v_bfe_u32 v24, v0, 4, 1")
    A("v_lshl_add_u32 v21, v24, 13, v21")
    A("v_and_b32 v25, 1, v0")
    A("v_lshl_add_u32 v21, v25, 3, v21")
    A("v_bfe_u32 v25, v0, 1, 1")
    A("s_lshl_b32 s64, s%d, 1" % S_W)
    A("v_add_u32 v25, s64, v25")
    A("v_and_b32 v23, 2, v23")
    A("v_lshl_add_u32 v23, v24, 2, v23")
    A("v_xor_b32 v25, v25, v23")
    A("v_lshl_add_u32 v21, v25, 4, v21")
    A("v_lshlrev_b32 %s, 4, v0" % v(V_L16))
    for i in range(4):
        A("s_xor_b32 s64, s%d, %d" % (S_W, i))
        A("s_lshl_b32 s65, s64, 11")
        A("v_add_u32 %s, s65, v21" % v(48 + 4 * i))
        hi_copies(A, 48 + 4 * i)
        A("s_lshl_b32 s65, s64, 10")
        A("v_add_u32 %s, s65, %s" % (v(V_RD + i), v(V_L16)))
    flag_addr_own(A, V_FL, 0, S_IDX)
    A("s_lshl_b32 s81, s%d, 14" % S_W)
    A("v_add_u32 %s, s81, %s" % (v(V_DM), v(V_L16)))
    A("v_bfe_u32 v24, v0, 1, 3")
    A("s_lshr_b32 s64, s%d, 1" % S_W)
    A("s_lshl_b32 s64, s64, 5")
    A("s_and_b32 s65, s%d, 1" % S_W)
    A("s_lshl_b32 s65, s65, 3")
    A("s_add_u32 s64, s64, s65")
    A("s_add_u32 s64, s64, %d" % ID_WO)
    A("v_add_u32 v24, s64, v24")
    A("v_lshlrev_b32 v24, 7, v24")
    A("v_and_b32 v23, 1, v0")
    A("v_lshl_add_u32 %s, v23, 2, v24" % v(V_FH))
    A("v_and_b32 v23, 31, v0")
    A("v_lshlrev_b32 v23, 2, v23")
    A("v_add_u32 %s, %d, v23" % (v(V_SR), L_ST))
    A("v_and_b32 v23, 15, v0")
    A("v_lshlrev_b32 v23, 4, v23")
    A("s_lshl_b32 s64, s%d, 8" % S_W)
    A("s_add_u32 s64, s64, %d" % L_ST)
    A("v_add_u32 %s, s64, v23" % v(V_SW))
    A("s_lshl_b32 s89, s%d, 12" % S_W)
    A("s_add_u32 s89, s89, 0x%x" % HS)
    A("s_lshl_b32 s82, s82, 10")
    A("s_add_u32 s82, s82, 0x%x" % ACT)
    late_start(A, cfg, census, 30)
    order = [16 * w_ + 4 * q + i for q in range(4) for w_ in range(4) for i in range(4)]
    units = []
    for u in range(16):
        n0 = order.index(4 * u)
        units.append(dict(slabs=[(sr, va, (64 * u + 8 * k) * 7168, 8192 * m + 1024 * k) for m, (sr, va) in enumerate(((SRD_A, 20), (SRD_B, 22))) for k in range(2)],
                          reads=[(256 + 4 * (n0 + i) + 2 * hf, 48 + 4 * i, 512 * hf) for i in range(4) for hf in range(2)]))
    load_weights_tr(A, units, 16, cfg.get("lslots", 8), 83, shared=True)
    A("s_mov_b32 s94, 0x3f803f80")
    for r in range(4):
        A("v_mov_b32 %s, s94" % v(FR + r))
    for n in range(64):
        A("v_mfma_f32_32x32x16_bf16 %s, %s, %s, %s" % (v(CS, 16), a(4 * n, 4), v(FR, 4), "0" if n == 0 else v(CS, 16)))
    A("s_barrier")
    A("s_mov_b32 s%d, 0" % S_STEP)
    A("s_mov_b32 s84, 0x%x" % HF)
    A("s_mov_b32 s85, s81")
    A("s_mov_b32 s92, 0xc0135761")
    A("s_mov_b32 s93, 0xbdd2d3e8")
    A("s_mov_b32 s95, 0x3a800000")
    A("s_mov_b32 s87, 0")

    A("s_mov_b32 s96, 0")
    A("L_f1_wait:")
    A("s_add_u32 s86, s%d, 1" % S_STEP)
    A("buffer_load_dword %s, %s, %s, 0 offen sc1" % (v(T + 16), v(V_FH), WSR))
    A("s_waitcnt vmcnt(0)")
    set_flag(A, V_FL, T + 17, S_STEP)
    A("s_mov_b32 s96, s%d" % S_STEP)
    A("s_cmp_eq_u32 s%d, 64" % S_STEP)
    A("s_cbranch_scc1 L_end")
    poll_flags(A, V_FH, T + 16, 86, "fh", preissued=1)
    A("L_f1_go:")
    for g in dma_block(A, V_DM, 85, 84, 16):
        for t in g:
            A(t)
    A("L_f1_top:")
    stamp(A, cfg, "ga")
    A("s_add_u32 s86, s%d, 2" % S_STEP)
    for k in range(4):
        A("buffer_load_dwordx4 %s, %s, %s, s89 offen offset:%d sc1" % (v(SL + 4 * k, 4), v(V_L16), WSR, 1024 * k))
    A("buffer_load_dword %s, %s, %s, 0 offen sc1" % (v(T + 16), v(V_FH), WSR))
    A("s_add_u32 s89, s89, 0x4000")
    A("s_add_u32 s84, s84, 0x10000")
    A("s_xor_b32 s85, s85, 0x10000")
    young = 5

    def report(cnt, cond):
        told = A.label("told")
        for x in cond:
            A(x)
        A("s_cbranch_scc1 %s" % told)
        if cnt is not None:
            A("s_waitcnt vmcnt(%d)" % cnt)
        set_flag(A, V_FL, T + 17, S_STEP)
        A("s_mov_b32 s96, s%d" % S_STEP)
        A(told + ":")
    L = Cnt(A, "lgkmcnt", 15)

    def rd(n):
        L.issue(n, "ds_read_b128 %s, %s offset:%d" % (v(FR + 4 * (n % DEPTH), 4), v(V_RD + n % 4), 1024 * order[n & ~3]))
    stat = []
    for (x, y) in ((0, 4), (8, 12), (0, 8)):
        for r in (0, 2):
            stat.append("v_pk_add_f32 %s, %s, %s" % (v(SL + x + r, 2), v(SL + x + r, 2), v(SL + y + r, 2)))
    for sw in ("v_permlane16_swap_b32", "v_permlane32_swap_b32"):
        stat += ["v_mov_b32 %s, %s" % (v(SL + 4 + r), v(SL + r)) for r in range(4)]
        stat += ["%s %s, %s" % (sw, v(SL + r), v(SL + 4 + r)) for r in range(4)]
        stat += ["v_pk_add_f32 %s, %s, %s" % (v(SL + r, 2), v(SL + r, 2), v(SL + 4 + r, 2)) for r in (0, 2)]
    stat.append(lambda: L.issue("st", "ds_write_b128 %s, %s" % (v(V_SW), v(SL, 4))))
    stat.append("v_add_u32 %s, 128, %s" % (v(V_SR + 5), v(V_SR)))
    st = dict(issued=0)

    def step(n, groups, stat):
        while st["issued"] < 64 and st["issued"] < n + DEPTH - 2 + (2 if n == 0 else 0):
            i_ = st["issued"]
            if i_ % 16 == 0:
                if i_ > n + 2:
                    break
                A("s_waitcnt vmcnt(%d)" % (12 - 4 * (i_ // 16) + young))
                A("s_barrier")
            rd(i_)
            st["issued"] += 1
        L.wait(n)
        d = v(ACC, 16)
        A("v_mfma_f32_32x32x16_bf16 %s, %s, %s, %s" % (d, a(4 * n, 4), v(FR + 4 * (n % DEPTH), 4), "0" if n == 0 else d))
        if n == 1:
            report(None, ["s_cmp_eq_u32 s96, s%d" % S_STEP, "s_cselect_b32 s64, 1, s87", "s_cmp_lg_u32 s64, 0"])
        if n == 16:
            report(young, ["s_cmp_eq_u32 s96, s%d" % S_STEP])
        if groups:
            for t_ in groups.pop(0):
                A(t_)
        if n >= 48:
            for _ in range(3):
                if stat:
                    x = stat.pop(0)
                    x() if callable(x) else A(x)
        if n == 60:
            A("buffer_load_dword %s, %s, %s, 0 offen sc1" % (v(T + 16), v(V_FH), WSR))
        if n == 62:
            assert not stat
            L.wait("st")
            A("s_barrier")
            for k in range(2):
                L.issue("sr", "ds_read2st64_b32 %s, %s offset0:%d offset1:%d" % (v(T + 2 * k, 2), v(V_SR), 2 * k, 2 * k + 1))
                L.issue("sr", "ds_read2st64_b32 %s, %s offset0:%d offset1:%d" % (v(T + 4 + 2 * k, 2), v(V_SR + 5), 2 * k, 2 * k + 1))
    for n in range(47):
        step(n, [], [])
    A("s_waitcnt vmcnt(0)")
    A("v_cmp_gt_u32 vcc, s86, %s" % v(T + 16))
    step(47, [], [])
    A("s_mov_b32 s87, 0")
    A("s_cbranch_vccnz L_f1_plain")
    A("s_mov_b32 s87, 1")
    keep = (list(L.q), st["issued"])
    groups, s1 = dma_block(A, V_DM, 85, 84, 16), list(stat)
    for n in range(48, 64):
        step(n, groups, s1)
    A("s_branch L_f1_join")
    A("L_f1_plain:")
    L.q, st["issued"] = keep
    s1 = list(stat)
    for n in range(48, 64):
        step(n, [], s1)
    A("L_f1_join:")
    stamp(A, cfg, "gb")
    for i in range(4):
        A("v_xor_b32 %s, 0x10000, %s" % (v(V_RD + i), v(V_RD + i)))
    A("v_xor_b32 %s, 1024, %s" % (v(V_SW), v(V_SW)))
    A("v_xor_b32 %s, 1024, %s" % (v(V_SR), v(V_SR)))
    A("v_mov_b32 %s, s92" % v(T + 8))
    A("s_waitcnt lgkmcnt(0)")
    A("v_pk_add_f32 %s, %s, %s" % (v(T, 2), v(T, 2), v(T + 2, 2)))
    A("v_pk_add_f32 %s, %s, %s" % (v(T + 4, 2), v(T + 4, 2), v(T + 6, 2)))
    A("v_add_f32 %s, %s, %s" % (v(T), v(T), v(T + 1)))
    A("v_add_f32 %s, %s, %s" % (v(T + 1), v(T + 4), v(T + 5)))
    A("v_mul_f32 %s, s95, %s" % (v(ST), v(T)))
    A("v_mul_f32 %s, s95, %s" % (v(T + 1), v(T + 1)))
    A("v_fma_f32 %s, -%s, %s, %s" % (v(T + 1), v(ST), v(ST), v(T + 1)))
    A("v_max_f32 %s, 0, %s" % (v(T + 1), v(T + 1)))
    A("v_add_f32 %s, 0x3727c5ac, %s" % (v(T + 1), v(T + 1)))
    A("v_rsq_f32 %s, %s" % (v(ST + 2), v(T + 1)))
    for i in range(0, 16, 2):
        A("v_pk_fma_f32 %s, %s, %s, %s op_sel_hi:[1,0,1] neg_lo:[0,1,0] neg_hi:[0,1,0]" % (v(ACC + i, 2), v(CS + i, 2), v(ST, 2), v(ACC + i, 2)))
    for i in range(0, 16, 2):
        A("v_pk_mul_f32 %s, %s, %s op_sel_hi:[1,0]" % (v(ACC + i, 2), v(ACC + i, 2), v(ST + 2, 2)))
    for i in range(0, 8, 2):
        A("v_pk_mul_f32 %s, %s, %s" % (v(T + i, 2), v(ACC + i, 2), v(ACC + i, 2)))
    for i in range(8):
        A("v_fma_f32 %s, %s, s93, %s" % (v(T + i), v(T + i), v(T + 8)))
    for i in range(0, 8, 2):
        A("v_pk_mul_f32 %s, %s, %s" % (v(T + i, 2), v(T + i, 2), v(ACC + i, 2)))
    for i in range(8):
        A("v_exp_f32 %s, %s" % (v(T + i), v(T + i)))
    for i in range(8):
        A("v_add_f32 %s, 1.0, %s" % (v(T + i), v(T + i)))
    for i in range(8):
        A("v_rcp_f32 %s, %s" % (v(T + i), v(T + i)))
    for i in range(0, 8, 2):
        A("v_pk_mul_f32 %s, %s, %s" % (v(T + i, 2), v(T + i, 2), v(ACC + i, 2)))
    for i in range(0, 8, 2):
        A("v_pk_mul_f32 %s, %s, %s" % (v(T + i, 2), v(T + i, 2), v(ACC + 8 + i, 2)))
    for i in range(4):
        A("v_cvt_pk_bf16_f32 %s, %s, %s" % (v(T + 12 + i), v(T + 2 * i), v(T + 2 * i + 1)))
    A("buffer_store_dwordx4 %s, %s, %s, s82 offen sc1" % (v(T + 12, 4), v(V_L16), WSR))
    stamp(A, cfg, "gc")
    stamp_flush(A, cfg, T + 18, 3)
    A("s_add_u32 s82, s82, %d" % (224 * 1024))
    A("s_add_u32 s%d, s%d, 1" % (S_STEP, S_STEP))
    A("s_cmp_lg_u32 s87, 0")
    A("s_cbranch_scc1 L_f1_top")
    A("s_waitcnt vmcnt(%d)" % (2 if cfg.get("stamps") else 1))
    A("v_cmp_gt_u32 vcc, s86, %s" % v(T + 16))
    A("s_cbranch_vccz L_f1_go")
    A("s_branch L_f1_wait")


def role_aux(A, cfg, census):
    V_FL, V_X, V_XN, V_P, V_HN, V_FP, V_ST, V_SR = 2, 3, 4, 5, 6, 7, 8, 9
    XR, PA, PB, F, T, OUT = 160, 32, 64, 96, 128, 144
    A("L_role_aux:")
    A("s_bfe_u32 s80, s%d, 0x10005" % S_IDX)
    A("s_lshl_b32 s80, s80, 2")
    A("s_and_b32 s81, s%d, 3" % S_IDX)
    A("s_add_u32 s80, s80, s81")
    srd(A, SRD_A, P_X, 2048 * 2048)
    flag_addr_own(A, V_FL, 0, S_IDX)
    A("v_and_b32 v20, 7, v0")
    A("v_lshrrev_b32 v21, 3, v0")
    A("s_lshl_b32 s64, s%d, 5" % S_W)
    A("v_add_u32 v22, s64, v21")
    A("v_lshlrev_b32 v23, 11, v20")
    A("v_lshl_add_u32 %s, v22, 4, v23" % v(V_X))
    A("v_lshlrev_b32 v23, 4, v20")
    A("v_lshl_add_u32 %s, v22, 8, v23" % v(V_XN))
    A("v_lshlrev_b32 %s, 5, v20" % v(V_SR))
    A("s_lshl_b32 s64, s%d, 3" % S_W)
    A("v_add_u32 %s, s64, %s" % (v(V_ST), v(V_SR)))
    A("s_mov_b32 s90, 0xffff0000")
    A("s_mov_b32 s91, 0x3b800000")
    A("s_mov_b32 s92, 0x3a800000")
    A("s_mov_b32 s93, 0x3727c5ac")
    A("s_mov_b32 s94, 0x43800000")

    def xsum(r):
        A("v_add_f32_dpp %s, %s, %s row_ror:8 row_mask:0xf bank_mask:0xf" % (v(r), v(r), v(r)))
        for sw in ("v_permlane16_swap_b32", "v_permlane32_swap_b32"):
            A("v_mov_b32 %s, %s" % (v(r + 1), v(r)))
            A("%s %s, %s" % (sw, v(r), v(r + 1)))
            A("v_add_f32 %s, %s, %s" % (v(r), v(r), v(r + 1)))

    def tree(dst, sq):
        for k in range(4):
            if sq:
                A("v_mul_f32 %s, %s, %s" % (v(dst + k), v(F + k), v(F + k)))
            else:
                A("v_add_f32 %s, %s, %s" % (v(dst + k), v(F + k), v(F + 4 + k)))
        for i in range(4 if sq else 8, 32):
            if sq:
                A("v_fmac_f32 %s, %s, %s" % (v(dst + i % 4), v(F + i), v(F + i)))
            else:
                A("v_add_f32 %s, %s, %s" % (v(dst + i % 4), v(dst + i % 4), v(F + i)))
        A("v_add_f32 %s, %s, %s" % (v(dst), v(dst), v(dst + 1)))
        A("v_add_f32 %s, %s, %s" % (v(dst + 2), v(dst + 2), v(dst + 3)))
        A("v_add_f32 %s, %s, %s" % (v(dst), v(dst), v(dst + 2)))

    def unpack(src):
        for d in range(16):
            A("v_lshlrev_b32 %s, 16, %s" % (v(F + 2 * d), v(src + d)))
            A("v_and_b32 %s, s90, %s" % (v(F + 2 * d + 1), v(src + d)))

    def layernorm():
        tree(T, False)
        xsum(T)
        A("v_mul_f32 %s, s91, %s" % (v(T + 4), v(T)))
        for i in range(32):
            A("v_sub_f32 %s, %s, %s" % (v(F + i), v(F + i), v(T + 4)))
        tree(T, True)
        xsum(T)
        A("v_mov_b32 %s, %s" % (v(T + 5), v(T)))
        A("ds_write_b64 %s, %s" % (v(V_ST), v(T + 4, 2)))
        A("s_waitcnt lgkmcnt(0)")
        A("s_barrier")
        A("ds_read_b128 %s, %s" % (v(T + 8, 4), v(V_SR)))
        A("ds_read_b128 %s, %s offset:16" % (v(T + 12, 4), v(V_SR)))
        A("v_xor_b32 %s, 256, %s" % (v(V_ST), v(V_ST)))
        A("v_xor_b32 %s, 256, %s" % (v(V_SR), v(V_SR)))
        A("s_waitcnt lgkmcnt(0)")
        A("v_add_f32 %s, %s, %s" % (v(T), v(T + 8), v(T + 10)))
        A("v_add_f32 %s, %s, %s" % (v(T + 1), v(T + 12), v(T + 14)))
        A("v_add_f32 %s, %s, %s" % (v(T), v(T), v(T + 1)))
        A("v_mul_f32 %s, 0x3e800000, %s" % (v(T), v(T)))
        A("v_add_f32 %s, %s, %s" % (v(T + 1), v(T + 9), v(T + 11)))
        A("v_add_f32 %s, %s, %s" % (v(T + 2), v(T + 13), v(T + 15)))
        A("v_add_f32 %s, %s, %s" % (v(T + 1), v(T + 1), v(T + 2)))
        A("v_mov_b32 %s, 0" % v(T + 2))
        for k in range(4):
            A("v_sub_f32 %s, %s, %s" % (v(T + 3), v(T + 8 + 2 * k), v(T)))
            A("v_fmac_f32 %s, %s, %s" % (v(T + 2), v(T + 3), v(T + 3)))
        A("v_fma_f32 %s, %s, s94, %s" % (v(T + 1), v(T + 2), v(T + 1)))
        A("v_mov_b32 %s, s93" % v(T + 2))
        A("v_fma_f32 %s, %s, s92, %s" % (v(T + 1), v(T + 1), v(T + 2)))
        A("v_rsq_f32 %s, %s" % (v(T + 1), v(T + 1)))
        A("v_sub_f32 %s, %s, %s" % (v(T + 4), v(T + 4), v(T)))
        A("v_mul_f32 %s, %s, %s" % (v(T + 4), v(T + 4), v(T + 1)))
        for d in range(16):
            for e in range(2):
                A("v_fma_f32 %s, %s, %s, %s" % (v(F + 2 * d + e), v(F + 2 * d + e), v(T + 1), v(T + 4)))
            A("v_cvt_pk_bf16_f32 %s, %s, %s" % (v(OUT + d), v(F + 2 * d), v(F + 2 * d + 1)))

    def xload(srd_, so, sc):
        for j in range(4):
            A("buffer_load_dwordx4 %s, %s, %s, s%d offen offset:%d%s" % (v(XR + 4 * j, 4), v(V_X), srd_, so, 128 * j, sc))

    A("s_lshl_b32 s84, s80, 14")
    A("s_mov_b32 s%d, 0" % S_STEP)
    xload(AR_, 84, "")
    census(A)
    A("s_waitcnt vmcnt(0)")
    A("L_ln1_top:")
    A("s_waitcnt vmcnt(4)")
    unpack(XR)
    A("s_lshr_b32 s64, s84, 16")
    A("s_lshl_b32 s64, s64, 16")
    A("s_bfe_u32 s65, s84, 0x1000f")
    A("s_lshl_b32 s65, s65, 15")
    A("s_add_u32 s64, s64, s65")
    A("s_bfe_u32 s65, s84, 0x1000e")
    A("s_lshl_b32 s65, s65, 7")
    A("s_add_u32 s64, s64, s65")
    A("s_add_u32 s85, s64, 0x%x" % XN)
    A("s_add_u32 s86, s85, 4096")
    A("s_add_u32 s84, s84, 0x20000")
    xload(AR_, 84, "")
    layernorm()
    A("s_waitcnt vmcnt(4)")
    A("v_mov_b32 %s, s%d" % (v(T), S_STEP))
    A("buffer_store_dword %s, %s, %s, 0 offen offset:64 sc1" % (v(T), v(V_FL), WSR))
    A("s_waitcnt vmcnt(1)")
    for j in range(4):
        A("buffer_store_dwordx4 %s, %s, %s, s%d offen offset:%d sc1" % (v(OUT + 4 * j, 4), v(V_XN), WSR, 85 + j // 2, 2048 * (j % 2)))
    A("s_add_u32 s%d, s%d, 1" % (S_STEP, S_STEP))
    A("s_cmp_gt_u32 s%d, 1" % S_STEP)
    A("s_cbranch_scc1 L_ln1_next")
    A("s_waitcnt vmcnt(0)")
    A("v_mov_b32 %s, s%d" % (v(T), S_STEP))
    A("buffer_store_dword %s, %s, %s, 0 offen offset:64 sc1" % (v(T), v(V_FL), WSR))
    A("L_ln1_next:")
    A("s_cmp_lt_u32 s%d, 32" % S_STEP)
    A("s_cbranch_scc1 L_ln1_top")
    A("s_waitcnt vmcnt(0)")
    A("v_mov_b32 %s, s%d" % (v(T), S_STEP))
    A("buffer_store_dword %s, %s, %s, 0 offen offset:64 sc1" % (v(T), v(V_FL), WSR))

    A("s_endpgm")


ROLES = dict(qkv=role_qkv, f1=role_f1, aux=role_aux,
             wo=lambda A, cfg, census: role_proj(A, cfg, census, "wo"),
             f2=lambda A, cfg, census: role_proj(A, cfg, census, "f2"))
```

```python
import sys
from common import *
import chain
try:
    import stream
except ImportError:
    stream = None

WSR = "s[%d:%d]" % (SRD_WS, SRD_WS + 3)
DBR = "s[%d:%d]" % (SRD_DBG, SRD_DBG + 3)
TICK_LANES = [0, 16, 32, 36, 40, 44, 48, 52]
V_ONE, V_INI = 28, 29
L_TICK = 163832


INIT_LANES = [12, 28, 46, 60]


def make_census(cfg):
    def early(A):
        skip = A.label("ce")
        A("s_barrier")
        A("s_or_b32 s64, s%d, s%d" % (S_CENS, S_W))
        A("s_cbranch_scc1 %s" % skip)
        A("s_mov_b64 exec, 1")
        A("buffer_atomic_add v%d, v%d, %s, 0 offen" % (V_ONE, V_INI, DBR))
        A("s_mov_b64 exec, -1")
        A(skip + ":")

    def census(A):
        done, top = A.label("cd"), A.label("ct")
        A("s_cmp_lg_u32 s%d, 0" % S_CENS)
        A("s_cbranch_scc1 %s" % done)
        A("v_mbcnt_lo_u32_b32 v17, -1, 0")
        A("v_mbcnt_hi_u32_b32 v17, -1, v17")
        A("v_lshlrev_b32 v17, 2, v17")
        mi = sum(1 << l for l in INIT_LANES)
        A(top + ":")
        A("buffer_load_dword v18, v17, %s, 0 offen sc1" % DBR)
        A("s_mov_b32 s64, 0x%x" % (mi & 0xffffffff))
        A("s_mov_b32 s65, 0x%x" % (mi >> 32))
        A("s_waitcnt vmcnt(0)")
        A("v_cmp_ne_u32 vcc, 64, v18")
        A("s_and_b64 s[64:65], s[64:65], vcc")
        ok = A.label("co")
        A("s_cbranch_scc0 %s" % ok)
        spin(A, top, cfg.get("csl", 12))
        A(ok + ":")
        if not cfg.get("force_slow"):
            m = sum(1 << l for l in TICK_LANES)
            A("v_cmp_ne_u32 vcc, 32, v18")
            A("s_mov_b32 s64, 0x%x" % (m & 0xffffffff))
            A("s_mov_b32 s65, 0x%x" % (m >> 32))
            A("s_and_b64 s[64:65], s[64:65], vcc")
            A("s_cbranch_scc1 L_recensus")
        A(done + ":")
    census.signal = early
    census.early = None
    return census


def prologue(A, cfg, census):
    A("s_cmp_ge_u32 s2, 256")
    A("s_cbranch_scc1 L_end")
    if cfg.get("dst"):
        A("s_memrealtime s[100:101]")
    A("s_load_dwordx16 s[8:23], s[0:1], 0")
    A("s_load_dwordx8 s[24:31], s[0:1], 64")
    A("s_load_dwordx4 s[32:35], s[0:1], 96")
    if cfg.get("cp", 1):
        A("s_getpc_b64 s[66:67]")
        A("L_pc:")
        A("s_lshr_b32 s64, s2, 3")
        A("s_lshl_b32 s64, s64, 8")
        A("v_add_u32 v30, s64, v0")
        A("v_lshlrev_b32 v30, 4, v30")
        A("v_min_u32 v30, L_last-L_pc-16, v30")
        A("global_load_dwordx4 v[248:251], v30, s[66:67]")
    A("s_getreg_b32 s%d, hwreg(HW_REG_XCC_ID)" % S_XCC)
    A("v_lshrrev_b32 v1, 6, v0")
    A("s_and_b32 s%d, s%d, 7" % (S_XCC, S_XCC))
    A("v_readfirstlane_b32 s%d, v1" % S_W)
    A("s_mov_b32 s%d, 0x05040100" % S_SELLO)
    A("s_mov_b32 s%d, 0x07060302" % S_SELHI)
    A("s_mov_b32 s%d, -2" % S_CLAMP)
    A("s_mov_b32 s%d, 0" % S_SPIN)
    A("s_mov_b32 s%d, 0" % S_CENS)
    A("s_mov_b32 s%d, %d" % (S_SLOW, 1 if cfg.get("force_slow") else 0))
    A("s_mov_b32 s%d, 0" % S_STEP)
    A("s_lshl_b32 s64, s%d, 6" % S_XCC)
    A("s_lshl_b32 s65, s%d, 4" % S_XCC)
    A("s_add_u32 s65, s65, 96")
    A("s_cmp_lt_u32 s%d, 2" % S_XCC)
    A("s_cselect_b32 s64, s64, s65")
    A("v_mov_b32 v3, s64")
    A("v_mov_b32 v2, 1")
    A("s_mul_i32 s64, s2, 3072")
    A("s_add_u32 s64, s64, 0x%x" % RING_P)
    A("v_lshl_add_u32 v8, v0, 4, s64")
    A("s_lshl_b32 s65, s2, 7")
    A("s_sub_u32 s65, s65, %d" % (192 * 16))
    A("v_lshl_add_u32 v9, v0, 4, s65")
    A("v_mov_b32 v10, 0x%x" % OOB)
    A("v_cmp_gt_u32 vcc, 200, v0")
    A("v_cndmask_b32 v9, v10, v9, vcc")
    A("v_cmp_gt_u32 vcc, 192, v0")
    A("v_cndmask_b32 v8, v9, v8, vcc")
    for r in range(4):
        A("v_cndmask_b32 v%d, 0, -1, vcc" % (4 + r))
    A("s_waitcnt lgkmcnt(0)")
    srd(A, SRD_WS, P_WS, WS_BYTES)
    srd(A, SRD_DBG, P_DBG, 256)
    if cfg.get("touch"):
        A("s_cmp_lg_u32 s%d, 1" % S_W)
        A("s_cbranch_scc1 L_notouch")
        A("s_mov_b64 exec, 15")
        A("v_and_b32 v30, 3, v0")
        A("v_lshlrev_b32 v30, 21, v30")
        A("v_and_b32 v31, 0x200000, v30")
        for k, ptr in enumerate((P_WQ, P_WK, P_WV, P_WO, P_WG, P_WU, P_WD)):
            A("global_load_dword v%d, v30, s[%d:%d]" % (240 + k, ptr, ptr + 1))
        A("global_load_dword v247, v31, s[%d:%d]" % (P_X, P_X + 1))
        A("s_mov_b64 exec, -1")
        A("L_notouch:")
    A("s_cmp_lg_u32 s%d, 0" % S_W)
    A("s_cbranch_scc1 L_notick")
    A("s_mov_b64 exec, 1")
    A("buffer_atomic_add v2, v3, %s, 0 offen sc0" % DBR)
    A("s_mov_b64 exec, -1")
    A("L_notick:")
    A("buffer_store_dwordx4 v[4:7], v8, %s, 0 offen sc1" % WSR)
    A("v_mov_b32 v3, 0x%x" % L_TICK)
    A("s_and_b32 s64, s2, 3")
    A("s_lshl_b32 s65, s64, 6")
    A("s_add_u32 s65, s65, 48")
    A("s_cmp_eq_u32 s64, 2")
    A("s_cselect_b32 s65, 184, s65")
    A("v_mov_b32 v%d, s65" % V_INI)
    A("v_mov_b32 v%d, 1" % V_ONE)
    A("s_cmp_lg_u32 s%d, 0" % S_W)
    A("s_cbranch_scc1 L_notick2")
    A("s_waitcnt vmcnt(1)")
    A("s_mov_b64 exec, 1")
    A("ds_write_b32 v3, v2")
    A("s_mov_b64 exec, -1")
    A("s_waitcnt lgkmcnt(0)")
    A("L_notick2:")
    A("s_barrier")
    A("ds_read_b32 v2, v3")
    A("s_waitcnt lgkmcnt(0)")
    A("v_readfirstlane_b32 s%d, v2" % S_TICK)
    A("s_waitcnt vmcnt(0)")
    census.signal(A)
    if cfg.get("force_slow"):
        A("s_mov_b32 s%d, s2" % S_IDX)
        A("s_branch L_dispatch")
    else:
        A("s_lshl_b32 s%d, s%d, 5" % (S_IDX, S_XCC))
        A("s_add_u32 s%d, s%d, s%d" % (S_IDX, S_IDX, S_TICK))
        A("s_cmp_lt_u32 s%d, 32" % S_TICK)
        A("s_cbranch_scc1 L_dispatch")
        census(A)
        A("L_recensus:")
        A("s_mov_b32 s%d, s%d" % (S_IDX, S_TICK))
        for x in range(7):
            A("v_readlane_b32 s64, v18, %d" % TICK_LANES[x])
            A("s_cmp_gt_u32 s%d, %d" % (S_XCC, x))
            A("s_cselect_b32 s64, s64, 0")
            A("s_add_u32 s%d, s%d, s64" % (S_IDX, S_IDX))
        A("s_mov_b32 s%d, 1" % S_SLOW)
        A("s_mov_b32 s%d, 1" % S_CENS)
        A("s_waitcnt vmcnt(0) lgkmcnt(0)")
        A("s_barrier")
    A("L_dispatch:")
    if cfg.get("cnt"):
        for r in (20, 21, 22, 23, 6, 7):
            A("s_mov_b32 s%d, 0" % r)
    A("v_mbcnt_lo_u32_b32 v0, -1, 0")
    A("v_mbcnt_hi_u32_b32 v0, -1, v0")
    c2 = dict(stamps=1) if cfg.get("pst") and not cfg.get("dst") else cfg
    stamp(A, c2, 0)
    stamp_flush(A, c2, 2, 1, 7)
    on = cfg["roles"]
    tgt = lambda r: "L_role_" + r if r in on else "L_role_off"
    A("s_cmp_ge_u32 s%d, 64" % S_IDX)
    A("s_cbranch_scc1 L_disp2")
    A("s_bitcmp1_b32 s%d, 4" % S_IDX)
    A("s_cbranch_scc1 %s" % tgt("vo"))
    A("s_branch %s" % tgt("qk"))
    A("L_disp2:")
    A("s_and_b32 s64, s%d, 31" % S_IDX)
    A("s_cmp_ge_u32 s%d, 192" % S_IDX)
    A("s_cbranch_scc1 L_disp3")
    A("s_cmp_ge_u32 s64, 16")
    A("s_cbranch_scc1 %s" % tgt("qkv"))
    A("s_cmp_lt_u32 s%d, 128" % S_IDX)
    A("s_cbranch_scc1 %s" % tgt("wo"))
    A("s_branch %s" % tgt("f2"))
    A("L_disp3:")
    A("s_cmp_lt_u32 s64, 28")
    A("s_cbranch_scc1 %s" % tgt("f1"))
    A("s_branch %s" % tgt("aux"))


def role_off(A, census):
    A("L_role_off:")
    census(A)
    flag_addr_own(A, 2, 0, S_IDX)
    A("s_mov_b32 s70, 64")
    set_flag(A, 2, 3, 70)
    A("buffer_store_dword v3, v2, %s, 0 offen offset:64 sc1" % WSR)
    A("s_endpgm")


def generate(cfg):
    A = Asm()
    census = make_census(cfg)
    prologue(A, cfg, census)
    A("L_giveup:")
    if cfg.get("debug"):
        A("v_mov_b32 v2, 1")
        A("v_mov_b32 v3, 244")
        A("s_mov_b64 exec, 1")
        A("buffer_atomic_add v2, v3, %s, 0 offen" % DBR)
    A("L_end:")
    A("s_endpgm")
    allroles = dict(qk=chain.role_qk, vo=chain.role_vo)
    if stream:
        allroles.update(stream.ROLES)
    for r in cfg["roles"]:
        allroles[r](A, cfg, census)
    if len(cfg["roles"]) < 7:
        role_off(A, census)
    A("L_last:")
    A("s_endpgm")
    n = A.fix_hazards()
    ref = open("cdna_kernels/%s.s.ref" % NAME).read().split("\n")
    head = [l for l in ref if l.startswith(";") and "@launch" not in l and "Override" not in l and "grid=ceil" not in l]
    k = NAME + "_kernel"
    out = "\n".join(head) + "\n; @launch grid=(256,1,1) block=(256,1,1) lds=163840\n"
    out += '.amdgcn_target "amdgcn-amd-amdhsa--gfx950"\n.text\n.globl %s\n.p2align 8\n.type %s,@function\n%s:\n' % (k, k, k)
    out += A.text()
    out += '''.section .rodata,"a"
.p2align 6
.amdhsa_kernel %s
  .amdhsa_next_free_vgpr 512
  .amdhsa_next_free_sgpr 102
  .amdhsa_accum_offset 256
  .amdhsa_group_segment_fixed_size 0
  .amdhsa_kernarg_size 112
  .amdhsa_user_sgpr_count 2
  .amdhsa_user_sgpr_kernarg_segment_ptr 1
  .amdhsa_system_sgpr_workgroup_id_x 1
  .amdhsa_float_denorm_mode_32 3
.end_amdhsa_kernel
''' % k
    return out, n


if __name__ == "__main__":
    cfg = dict(roles=["qk", "vo", "wo", "f2", "qkv", "f1", "aux"])
    for kv in sys.argv[2:]:
        k_, v_ = kv.split("=")
        cfg[k_] = v_.split(",") if k_ in ("roles", "sp") else int(v_)
    text, n = generate(cfg)
    open(sys.argv[1], "w").write(text)
    print("wrote %s: %d bytes, %d lines, %d nops inserted" % (sys.argv[1], len(text), text.count("\n"), n))
```
